```python
import torch

def _softmax(x, axis=-1):
    return torch.softmax(x, dim=axis)
def _gelu(x):
    return torch.nn.functional.gelu(x, approximate="tanh")
def _silu(x):
    return torch.nn.functional.silu(x)
def _sigmoid(x):
    return torch.sigmoid(x)
def _layernorm(x, axis=-1, eps=1e-5):
    m = x.mean(dim=axis, keepdim=True)
    v = x.var(dim=axis, keepdim=True, unbiased=False)
    return (x - m) / torch.sqrt(v + eps)
def _scatter_add(tgt, idx, src, axis=0):
    return tgt.clone().index_add_(axis, idx, src)
def _segment_sum(src, seg, n):
    out = torch.zeros((n,) + src.shape[1:], dtype=src.dtype)
    return out.index_add_(0, seg, src)
def _pad(x, pw):
    flat = tuple(v for pair in reversed(pw) for v in pair)
    return torch.nn.functional.pad(x, flat)

kernel_name = 'parallel_sum__mha_block_cached__geglu_ffn__decode'

def setup_inputs():

    _w = (lambda a: (lambda t: t.to(torch.bfloat16) if t.is_floating_point() else t)(torch.as_tensor(a)))
    def _A_setup():
        B, Sq, D = 1, 1, 1024
        H, Sk, Dh = 32, 32768, 128
        return {
            "x": _w((lambda *s: torch.randn(*s, dtype=torch.bfloat16) * 0.05)(B, Sq, D)),
            "k_cache": _w((lambda *s: torch.randn(*s, dtype=torch.bfloat16) * 3.2)(B, H, Sk, Dh)),
            "v_cache": _w((lambda *s: torch.randn(*s, dtype=torch.bfloat16) * 1.6)(B, H, Sk, Dh)),
            "wq": _w((lambda *s: torch.randn(*s, dtype=torch.bfloat16) * 3.2)(D, H * Dh) * (D ** -0.5)),
            "wo": _w((lambda *s: torch.randn(*s, dtype=torch.bfloat16) * 1.6)(H * Dh, D) * ((H * Dh) ** -0.5)),
        }
    _A_in = _A_setup()

    def _B_setup():
        B, S, D, F = 1, 1, 1024, 3584
        return {
            "x": _w((lambda *s: torch.randn(*s, dtype=torch.bfloat16) * 0.05)(B, S, D)),
            "w_gate": _w((lambda *s: torch.randn(*s, dtype=torch.bfloat16) * 0.05)(D, F)),
            "w_up": _w((lambda *s: torch.randn(*s, dtype=torch.bfloat16) * 0.05)(D, F)),
            "w_down": _w((lambda *s: torch.randn(*s, dtype=torch.bfloat16) * 0.05)(F, D)),
        }
    _B_in = _B_setup()

    return {
        "A_x": _A_in["x"],
        "A_k_cache": _A_in["k_cache"],
        "A_v_cache": _A_in["v_cache"],
        "A_wq": _A_in["wq"],
        "A_wo": _A_in["wo"],
        "B_x": _B_in["x"],
        "B_w_gate": _B_in["w_gate"],
        "B_w_up": _B_in["w_up"],
        "B_w_down": _B_in["w_down"],
    }

def reference(A_x, A_k_cache, A_v_cache, A_wq, A_wo, B_x, B_w_gate, B_w_up, B_w_down):
    def _A_ref(x, k_cache, v_cache, wq, wo):
        B, Sq, D = x.shape
        H, Dh = 32, 128
        q = (lambda x, *d: x.permute(*d))((x @ wq).reshape(B, Sq, H, Dh), 0, 2, 1, 3)
        scores = torch.einsum("bhqd,bhkd->bhqk", q, k_cache) * (Dh ** -0.5)
        p = _softmax(scores, axis=-1)
        o = torch.einsum("bhqk,bhkd->bhqd", p, v_cache)
        return (lambda x, *d: x.permute(*d))(o, 0, 2, 1, 3).reshape(B, Sq, H * Dh) @ wo

    def _B_ref(x, w_gate, w_up, w_down):
        return (_gelu(x @ w_gate) * (x @ w_up)) @ w_down

    x = A_x
    xn = _layernorm(x, axis=-1)
    return x + _A_ref(xn, A_k_cache, A_v_cache, A_wq, A_wo) + _B_ref(xn, B_w_gate, B_w_up, B_w_down)
```

```python
import re

TRANS = ("v_exp_f32", "v_log_f32", "v_rcp_f32", "v_rsq_f32", "v_sqrt_f32", "v_sin_f32", "v_cos_f32")
NO_DST_SALU = ("s_cmp", "s_cbranch", "s_waitcnt", "s_barrier", "s_nop", "s_sleep", "s_setprio",
               "s_endpgm", "s_branch", "s_bitcmp", "s_setreg", "s_sendmsg")


def split_ops(s):
    out, depth, cur = [], 0, ""
    for ch in s:
        if ch in "[(":
            depth += 1
        elif ch in "])":
            depth -= 1
        if ch == "," and depth == 0:
            out.append(cur.strip())
            cur = ""
        else:
            cur += ch
    if cur.strip():
        out.append(cur.strip())
    return out


def regs_of(op):
    op = op.strip()
    op = op.split(" ")[0]
    op = op.lstrip("-")
    m = re.match(r"^abs\((.*)\)$", op)
    if m:
        op = m.group(1)
    m = re.match(r"^\|(.*)\|$", op)
    if m:
        op = m.group(1)
    m = re.match(r"^([vsa])(\d+)$", op)
    if m:
        return [m.group(1) + m.group(2)]
    m = re.match(r"^([vsa])\[(\d+):(\d+)\]$", op)
    if m:
        return [m.group(1) + str(i) for i in range(int(m.group(2)), int(m.group(3)) + 1)]
    if op in ("vcc", "vcc_lo", "vcc_hi"):
        return ["vcc"]
    if op in ("exec", "exec_lo", "exec_hi"):
        return ["exec"]
    if op == "m0":
        return ["m0"]
    return []


class Ins:
    def __init__(self, text):
        self.text = text
        t = text.split(";")[0].strip()
        self.label = None
        self.kind = "other"
        self.reads, self.writes = set(), set()
        self.srcc, self.srcab, self.dst = [], set(), []
        self.dpp = False
        self.trans = False
        self.states = 1
        self.target = None
        self.store_data = set()
        self.lanesel = set()
        if t.endswith(":"):
            self.label = t[:-1]
            self.kind = "label"
            self.states = 0
            return
        if not t or t.startswith("."):
            self.kind = "dir"
            self.states = 0
            return
        parts = t.split(None, 1)
        mn = parts[0]
        self.mn = mn
        ops = split_ops(parts[1]) if len(parts) > 1 else []
        R = [regs_of(o) for o in ops]
        if mn == "s_nop":
            self.kind = "nop"
            self.states = int(ops[0], 0) + 1
        elif mn.startswith("v_mfma"):
            self.kind = "mfma"
            self.dst = R[0]
            self.writes |= set(R[0])
            self.srcab = set(R[1]) | set(R[2])
            self.srcc = R[3]
            self.reads |= self.srcab | set(R[3])
            assert "16x16x32_bf16" in mn, mn
        elif mn.startswith("v_"):
            self.kind = "valu"
            self.dpp = mn.endswith("_dpp")
            self.trans = any(mn.startswith(x) for x in TRANS)
            if mn.startswith("v_permlane"):
                self.kind = "valu"
                self.perm = True
                self.writes |= set(R[0]) | set(R[1])
                self.reads |= set(R[0]) | set(R[1])
            elif mn.startswith(("v_add_co", "v_sub_co", "v_addc_co", "v_subb_co", "v_subrev_co")):
                self.writes |= set(R[0]) | set(R[1])
                for r in R[2:]:
                    self.reads |= set(r)
            else:
                self.writes |= set(R[0])
                for r in R[1:]:
                    self.reads |= set(r)
                if mn.startswith(("v_fmac", "v_dot2c", "v_writelane")) or self.dpp:
                    self.reads |= set(R[0])
                if mn.startswith("v_cmpx"):
                    self.writes.add("exec")
                if mn.startswith(("v_readlane", "v_writelane")):
                    self.lanesel = set(R[2])
        elif mn.startswith(("global_load", "buffer_load")):
            self.kind = "vmem"
            if "lds" in mn or t.rstrip().endswith(" lds") or " lds " in t:
                for r in R:
                    self.reads |= set(r)
                self.reads.add("m0")
                self.ldsdma = True
            else:
                self.writes |= set(R[0])
                for r in R[1:]:
                    self.reads |= set(r)
        elif mn.startswith(("global_store", "buffer_store")):
            self.kind = "vmem"
            for r in R:
                self.reads |= set(r)
            data = R[1] if mn.startswith("global") else R[0]
            if len(data) >= 3:
                self.store_data = set(data)
        elif mn.startswith(("global_atomic", "buffer_atomic")):
            self.kind = "vmem"
            if mn.startswith("global") and re.search(r"\bsc0\b", t):
                self.writes |= set(R[0])
                for r in R[1:]:
                    self.reads |= set(r)
            else:
                for r in R:
                    self.reads |= set(r)
        elif mn.startswith("ds_"):
            self.kind = "ds"
            if mn.startswith(("ds_read", "ds_bpermute", "ds_permute", "ds_swizzle")) or "_rtn" in mn:
                self.writes |= set(R[0])
                for r in R[1:]:
                    self.reads |= set(r)
            else:
                for r in R:
                    self.reads |= set(r)
        elif mn.startswith("s_"):
            self.kind = "salu"
            if mn.startswith(("s_cbranch", "s_branch")):
                self.kind = "branch"
                self.target = ops[0]
                self.uncond = mn == "s_branch"
            elif mn == "s_endpgm":
                self.kind = "end"
            elif any(mn.startswith(x) for x in NO_DST_SALU):
                for r in R:
                    self.reads |= set(r)
            else:
                self.writes |= set(R[0])
                for r in R[1:]:
                    self.reads |= set(r)
                if "saveexec" in mn:
                    self.writes.add("exec")
        else:
            raise ValueError("unknown instruction: " + text)


def need(p, c):
    n = 0
    pv = {r for r in p.writes if r[0] == "v" and r != "vcc"}
    ps = {r for r in p.writes if r[0] == "s" or r == "vcc"}
    if p.kind == "valu":
        if c.kind == "mfma" and pv & c.reads:
            n = max(n, 2)
        if c.kind == "valu":
            if c.dpp and pv & c.reads:
                n = max(n, 2)
            if getattr(c, "perm", False) and pv & c.reads:
                n = max(n, 2)
            if c.mn.startswith(("v_readlane", "v_readfirstlane")) and pv & c.reads:
                n = max(n, 1)
            if ps & c.reads:
                n = max(n, 2)
            if ps & c.lanesel:
                n = max(n, 4)
            if p.trans and not c.trans and pv & (c.reads | c.writes):
                n = max(n, 1)
            if "exec" in p.writes:
                n = max(n, 5)
        if c.kind == "mfma" and "exec" in p.writes:
            n = max(n, 4)
        if c.kind == "vmem" and ps & c.reads:
            n = max(n, 5)
        if p.trans and c.kind in ("vmem", "ds") and pv & c.reads:
            n = max(n, 1)
    if p.kind == "mfma":
        d = set(p.dst)
        if c.kind == "mfma":
            if d & c.srcab:
                n = max(n, 8)
            if d & set(c.srcc):
                if list(c.srcc) != list(p.dst):
                    n = max(n, 6)
            elif d & set(c.dst):
                n = max(n, 6)
        elif c.kind in ("valu", "vmem", "ds"):
            if d & (c.reads | c.writes):
                n = max(n, 8)
        if c.kind == "valu" and set(p.srcc) & c.writes:
            n = max(n, 3)
    if p.kind == "vmem" and p.store_data:
        if c.kind == "valu" and p.store_data & c.writes:
            n = max(n, 2)
        elif p.store_data & c.writes:
            n = max(n, 1)
    if p.kind == "salu" and "m0" in p.writes and "m0" in c.reads:
        n = max(n, 1)
    return n


class Asm:
    def __init__(self):
        self.ins = []

    def __call__(self, text):
        for line in text.strip("\n").split("\n"):
            line = line.strip()
            if not line or line.startswith(";"):
                continue
            self.add(line)

    def add(self, line):
        c = Ins(line)
        if c.kind not in ("label", "dir"):
            dist = 0
            pad = 0
            for p in reversed(self.ins):
                if p.kind in ("end",) or (p.kind == "branch" and p.uncond):
                    break
                if p.kind in ("label", "dir"):
                    continue
                n = need(p, c)
                if n > dist:
                    pad = max(pad, n - dist)
                dist += p.states
                if dist >= 12:
                    break
            if pad:
                self.ins.append(Ins("s_nop %d" % (pad - 1)))
        self.ins.append(c)

    def label(self, name):
        self.add(name + ":")

    def verify_edges(self):
        pos = {i.label: k for k, i in enumerate(self.ins) if i.label}
        errs = []
        for k, b in enumerate(self.ins):
            if b.kind != "branch":
                continue
            t = pos[b.target]
            prods = []
            dist = 0
            for p in reversed(self.ins[: k + 1]):
                if p.kind in ("label", "dir"):
                    continue
                if p is not b and (p.kind == "end" or (p.kind == "branch" and p.uncond)):
                    break
                prods.append((p, dist))
                dist += p.states
                if dist >= 12:
                    break
            d2 = 0
            for c in self.ins[t:]:
                if c.kind in ("label", "dir"):
                    continue
                for p, d1 in prods:
                    if p is b:
                        continue
                    n = need(p, c)
                    if n > d1 + d2:
                        errs.append("edge %s: '%s' -> '%s' needs %d has %d" % (b.text, p.text, c.text, n, d1 + d2))
                d2 += c.states
                if d2 >= 12 or c.kind == "end" or (c.kind == "branch" and c.uncond):
                    break
        return errs

    def text(self):
        out = []
        for i in self.ins:
            if i.kind == "label":
                out.append(i.text)
            else:
                out.append("    " + i.text)
        return "\n".join(out) + "\n"

    def max_regs(self):
        mv, ms = -1, -1
        for i in self.ins:
            for r in i.reads | i.writes:
                if r[0] == "v" and r != "vcc":
                    mv = max(mv, int(r[1:]))
                elif r[0] == "s":
                    ms = max(ms, int(r[1:]))
        return mv, ms
```

```python
import sys, struct, argparse
from asmlib import Asm

NAME = "parallel_sum__mha_block_cached__geglu_ffn__decode"

HEADER = """; Kernarg layout for this problem (96 bytes, ptrs only, base s[0:1]):
"""


def f32(x):
    return "0x%08x" % struct.unpack("<I", struct.pack("<f", x))[0]


LOG2E = 1.4426950408889634
SCALE = 128 ** -0.5
FULL = "row_mask:0xf bank_mask:0xf"

X1 = 0x00000
X1B = 0x40000
X2 = 0x80000
X3A = 0xC0000
X3B = 0xE0000
TS = 0x100000

L_P1 = 0
L_Q = 12288
L_H = 12544
L_O = 13056
L_P3 = 13568
LDS_BYTES = 13568 + 8192


def vr(a, n=1):
    return "v%d" % a if n == 1 else "v[%d:%d]" % (a, a + n - 1)


def gen(W=8, NS=2, stamps=False, spin=1 << 20):
    assert W == 8
    A = Asm()
    NIT = 4096 // (16 * W)
    STEP = W * 4096
    sX, sK, sV, sWQ, sWO, sWG, sWU, sWD, sOUT, sDBG, sWS = (
        "s[4:5]", "s[6:7]", "s[8:9]", "s[10:11]", "s[12:13]", "s[16:17]", "s[18:19]",
        "s[20:21]", "s[22:23]", "s[24:25]", "s[26:27]")
    sWAVE, sH, sS, sT0, sT1, sT2, sT3, sCNT, sSPIN = "s28", "s29", "s30", "s31", "s32", "s33", "s34", "s35", "s36"
    nstamp = [0]

    def stamp():
        if stamps:
            k = nstamp[0]
            A("s_memrealtime s[%d:%d]" % (64 + 2 * k, 65 + 2 * k))
            A("s_waitcnt lgkmcnt(0)")
            nstamp[0] += 1

    def dump_stamps(n):
        if not stamps:
            return
        A("s_waitcnt vmcnt(0) lgkmcnt(0)")
        A("s_mov_b64 exec, 1")
        A("s_lshl_b32 %s, s2, 4" % sT0)
        A("s_add_u32 %s, %s, %s" % (sT0, sT0, sWAVE))
        A("s_lshl_b32 %s, %s, 8" % (sT0, sT0))
        A("s_add_u32 %s, %s, 0x%x" % (sT0, sT0, TS))
        A("v_mov_b32 v1, %s" % sT0)
        for k in range(n):
            A("v_mov_b32 v2, s%d" % (64 + 2 * k))
            A("v_mov_b32 v3, s%d" % (65 + 2 * k))
            A("global_store_dwordx2 v1, v[2:3], %s offset:%d" % (sWS, 8 * k))
        A("s_getreg_b32 %s, hwreg(HW_REG_XCC_ID)" % sT1)
        A("s_getreg_b32 %s, hwreg(HW_REG_HW_ID)" % sT2)
        A("v_mov_b32 v2, %s" % sT1)
        A("v_mov_b32 v3, %s" % sT2)
        A("global_store_dwordx2 v1, v[2:3], %s offset:248" % sWS)

    def round_bf16(v):
        A("v_cvt_pk_bf16_f32 %s, %s, %s" % (v, v, v))
        A("v_lshlrev_b32 %s, 16, %s" % (v, v))

    def wave_sum(v, t, rows_uniform_from=None):
        steps = [8, 4, 2, 1] if rows_uniform_from is None else rows_uniform_from
        for r in steps:
            A("v_add_f32_dpp %s, %s, %s row_ror:%d %s" % (v, v, v, r, FULL))
        A("v_mov_b32 %s, %s" % (t, v))
        A("v_permlane16_swap_b32 %s, %s" % (v, t))
        A("v_add_f32 %s, %s, %s" % (v, v, t))
        A("v_mov_b32 %s, %s" % (t, v))
        A("v_permlane32_swap_b32 %s, %s" % (v, t))
        A("v_add_f32 %s, %s, %s" % (v, v, t))

    def make_masks(MASK, vC, t):
        A("v_and_b32 %s, 1, %s" % (t[0], vC))
        A("v_lshlrev_b32 %s, 4, %s" % (t[0], t[0]))
        A("v_mov_b32 %s, 0xffff" % t[1])
        A("v_lshlrev_b32 %s, %s, %s" % (t[1], t[0], t[1]))
        A("v_bfe_u32 %s, %s, 1, 2" % (t[0], vC))
        for r in range(4):
            A("v_cmp_eq_u32 vcc, %d, %s" % (r, t[0]))
            A("v_cndmask_b32 %s, 0, %s, vcc" % (vr(MASK + r), t[1]))

    A("s_cmp_ge_u32 s2, 256")
    A("s_cbranch_scc1 L_end")
    A("s_load_dwordx16 s[4:19], s[0:1], 0")
    A("s_load_dwordx8 s[20:27], s[0:1], 64")
    stamp_entry = None
    if stamps:
        A("s_memrealtime s[64:65]")
        nstamp[0] = 1
    A("v_lshrrev_b32 v1, 6, v0")
    A("s_lshr_b32 %s, s2, 3" % sH)
    A("v_readfirstlane_b32 %s, v1" % sWAVE)
    A("s_and_b32 %s, s2, 7" % sS)
    A("v_and_b32 v2, 15, v0")
    A("v_bfe_u32 v3, v0, 4, 2")
    A("v_and_b32 v1, 63, v0")
    A("s_cmp_eq_u32 %s, %d" % (sWAVE, W))
    A("s_cbranch_scc1 L_service")

    vLANE, vC, vG = "v1", "v2", "v3"
    vKO, vVO = "v4", "v5"
    vM, vL, vT, vP, vU0, vU1 = "v6", "v7", "v8", "v9", "v10", "v11"
    MASK = 12
    AQ = 16
    ACCL, ACCH, DQK = 32, 36, 40
    S1, S2 = 44, 48
    KB = [52 + 32 * i for i in range(NS)]
    VB = [68 + 32 * i for i in range(NS)]
    WT = 52 + 32 * NS
    XO = WT + 48
    vXS, vXOo, vWQo, vWGo = vM, vL, vT, vP

    A("v_lshlrev_b32 %s, 5, %s" % (vXS, vLANE))
    A("s_lshl_b32 %s, %s, 7" % (sT0, sS))
    A("s_lshl_b32 %s, %s, 4" % (sT1, sWAVE))
    A("s_add_u32 %s, %s, %s" % (sT0, sT0, sT1))
    A("v_lshl_add_u32 %s, %s, 2, %s" % (vU0, vG, sT0))
    A("v_lshlrev_b32 %s, 1, %s" % (vXOo, vU0))
    A("s_lshl_b32 %s, %s, 8" % (sT1, sH))
    A("v_lshl_add_u32 %s, %s, 4, %s" % (vU1, vC, sT1))
    A("v_lshl_add_u32 %s, %s, 13, %s" % (vWQo, vU0, vU1))
    A("s_movk_i32 %s, 7168" % sT2)
    A("s_cmp_lt_u32 %s, 28" % sH)
    A("s_cselect_b32 %s, %s, 0" % (sT2, sT2))
    A("s_cselect_b32 %s, -1, 0" % sT3)
    A("v_mul_u32_u24 %s, %s, %s" % (vWGo, sT2, vU0))
    A("v_and_b32 %s, %s, %s" % (vU1, sT3, vU1))
    A("v_add_u32 %s, %s, %s" % (vWGo, vWGo, vU1))
    A("s_lshl_b32 %s, s2, 20" % sT0)
    A("s_lshl_b32 %s, %s, 12" % (sT1, sWAVE))
    A("s_add_u32 %s, %s, %s" % (sT0, sT0, sT1))
    A("v_lshlrev_b32 %s, 10, %s" % (vVO, vG))
    A("v_lshl_add_u32 %s, %s, 4, %s" % (vVO, vC, vVO))
    A("v_add_u32 %s, %s, %s" % (vVO, sT0, vVO))
    A("v_bfe_u32 %s, v0, 2, 2" % vU0)
    A("v_and_b32 %s, 3, v0" % vU1)
    A("v_lshlrev_b32 %s, 8, %s" % (vKO, vU0))
    A("v_lshl_add_u32 %s, %s, 6, %s" % (vKO, vG, vKO))
    A("v_lshl_add_u32 %s, %s, 4, %s" % (vKO, vU1, vKO))
    A("v_add_u32 %s, %s, %s" % (vKO, sT0, vKO))
    A("s_waitcnt lgkmcnt(0)")
    A("global_load_dwordx4 %s, %s, %s" % (vr(S1, 4), vXS, sX))
    A("global_load_dwordx4 %s, %s, %s offset:16" % (vr(S2, 4), vXS, sX))
    A("global_load_dwordx2 %s, %s, %s" % (vr(XO, 2), vXOo, sX))
    for u in range(4):
        A("global_load_dwordx4 %s, %s, %s nt" % (vr(WT + 4 * u, 4), vWQo, sWQ))
        if u < 3:
            A("v_add_u32 %s, 0x2000, %s" % (vWQo, vWQo))
    for u in range(4):
        A("global_load_dwordx4 %s, %s, %s nt" % (vr(WT + 16 + 4 * u, 4), vWGo, sWG))
        A("global_load_dwordx4 %s, %s, %s nt" % (vr(WT + 32 + 4 * u, 4), vWGo, sWU))
        if u < 3:
            A("v_add_u32 %s, %s, %s" % (vWGo, sT2, vWGo))

    def load_k(b):
        for t in range(4):
            A("global_load_dwordx4 %s, %s, %s offset:%d nt" % (vr(KB[b] + 4 * t, 4), vKO, sK, 1024 * t))
        A("v_add_u32 %s, 0x%x, %s" % (vKO, STEP, vKO))

    def load_v(b):
        for u in range(4):
            A("global_load_dwordx4 %s, %s, %s offset:%d nt" % (vr(VB[b] + 4 * u, 4), vVO, sV, 256 * u))
        A("v_add_u32 %s, 0x%x, %s" % (vVO, STEP, vVO))

    for b in range(NS):
        load_k(b)
        load_v(b)
    NKV = 8 * NS
    make_masks(MASK, vC, [vU0, vU1])
    A("s_waitcnt vmcnt(%d)" % (NKV + 12))
    stamp()
    for i in range(8):
        src = vr(S1 + i)
        A("v_lshlrev_b32 %s, 16, %s" % (vr(AQ + 2 * i), src))
        A("v_and_b32 %s, 0xffff0000, %s" % (vr(AQ + 2 * i + 1), src))
    A("v_add_f32 %s, %s, %s" % (vM, vr(AQ), vr(AQ + 1)))
    A("v_add_f32 %s, %s, %s" % (vL, vr(AQ + 2), vr(AQ + 3)))
    for i in range(4, 16, 2):
        A("v_add_f32 %s, %s, %s" % (vM, vM, vr(AQ + i)))
        A("v_add_f32 %s, %s, %s" % (vL, vL, vr(AQ + i + 1)))
    A("v_add_f32 %s, %s, %s" % (vM, vM, vL))
    wave_sum(vM, vL)
    A("v_mul_f32 %s, %s, %s" % (vM, f32(1.0 / 1024), vM))
    for i in range(16):
        A("v_sub_f32 %s, %s, %s" % (vr(AQ + i), vr(AQ + i), vM))
    A("v_mul_f32 %s, %s, %s" % (vT, vr(AQ), vr(AQ)))
    A("v_mul_f32 %s, %s, %s" % (vL, vr(AQ + 1), vr(AQ + 1)))
    for i in range(2, 16, 2):
        A("v_fmac_f32 %s, %s, %s" % (vT, vr(AQ + i), vr(AQ + i)))
        A("v_fmac_f32 %s, %s, %s" % (vL, vr(AQ + i + 1), vr(AQ + i + 1)))
    A("v_add_f32 %s, %s, %s" % (vT, vT, vL))
    wave_sum(vT, vL)
    A("v_mul_f32 %s, %s, %s" % (vT, f32(1.0 / 1024), vT))
    round_bf16(vM)
    round_bf16(vT)
    A("v_add_f32 %s, %s, %s" % (vT, f32(1e-5), vT))
    round_bf16(vT)
    A("v_sqrt_f32 %s, %s" % (vT, vT))
    round_bf16(vT)
    A("v_rcp_f32 %s, %s" % (vT, vT))
    xo = [vr(S1 + i) for i in range(4)]
    A("v_lshlrev_b32 %s, 16, %s" % (xo[0], vr(XO)))
    A("v_and_b32 %s, 0xffff0000, %s" % (xo[1], vr(XO)))
    A("v_lshlrev_b32 %s, 16, %s" % (xo[2], vr(XO + 1)))
    A("v_and_b32 %s, 0xffff0000, %s" % (xo[3], vr(XO + 1)))
    for u in range(4):
        A("v_sub_f32 %s, %s, %s" % (xo[u], xo[u], vM))
    for u in range(4):
        A("v_cvt_pk_bf16_f32 %s, %s, %s" % (xo[u], xo[u], xo[u]))
    for u in range(4):
        A("v_lshlrev_b32 %s, 16, %s" % (xo[u], xo[u]))
    for u in range(4):
        A("v_mul_f32 %s, %s, %s" % (xo[u], xo[u], vT))
    for u in range(4):
        A("v_cvt_pk_bf16_f32 %s, %s, %s" % (xo[u], xo[u], xo[u]))
    for u in range(4):
        for r in range(4):
            A("v_and_b32 %s, %s, %s" % (vr(AQ + 4 * u + r), xo[u], vr(MASK + r)))
    A("v_and_b32 %s, 1, %s" % (vU0, vG))
    A("v_lshlrev_b32 %s, 4, %s" % (vU0, vU0))
    A("v_lshl_add_u32 %s, %s, 5, %s" % (vU0, vC, vU0))
    A("s_mul_i32 %s, %s, 1536" % (sT0, sWAVE))
    A("v_add_u32 %s, %s, %s" % (vU1, sT0, vU0))
    A("s_waitcnt vmcnt(%d)" % (NKV + 8))
    for u in range(4):
        A("v_mfma_f32_16x16x32_bf16 %s, %s, %s, %s" % (vr(DQK, 4), vr(AQ + 4 * u, 4), vr(WT + 4 * u, 4),
                                                     "0" if u == 0 else vr(DQK, 4)))
    A("ds_write_b128 %s, %s offset:%d" % (vU1, vr(DQK, 4), L_P1))
    A("s_waitcnt lgkmcnt(0)")
    stamp()
    A("s_barrier")
    A("s_waitcnt vmcnt(%d)" % NKV)
    for u in range(4):
        A("v_mfma_f32_16x16x32_bf16 %s, %s, %s, %s" % (vr(ACCL, 4), vr(AQ + 4 * u, 4), vr(WT + 16 + 4 * u, 4),
                                                     "0" if u == 0 else vr(ACCL, 4)))
        A("v_mfma_f32_16x16x32_bf16 %s, %s, %s, %s" % (vr(ACCH, 4), vr(AQ + 4 * u, 4), vr(WT + 32 + 4 * u, 4),
                                                     "0" if u == 0 else vr(ACCH, 4)))
    A("ds_write_b128 %s, %s offset:%d" % (vU1, vr(ACCL, 4), L_P1 + 512))
    A("ds_write_b128 %s, %s offset:%d" % (vU1, vr(ACCH, 4), L_P1 + 1024))
    A("s_lshl_b32 %s, %s, 7" % (sT0, sH))
    A("s_lshl_b32 %s, %s, 4" % (sT1, sWAVE))
    A("s_add_u32 %s, %s, %s" % (sT0, sT0, sT1))
    A("v_lshl_add_u32 %s, %s, 2, %s" % (vr(XO), vG, sT0))
    A("v_lshlrev_b32 %s, 11, %s" % (vr(XO), vr(XO)))
    A("s_lshl_b32 %s, %s, 8" % (sT0, sS))
    A("v_lshl_add_u32 %s, %s, 4, %s" % (vr(XO), vC, vr(XO)))
    A("v_add_u32 %s, %s, %s" % (vr(XO), sT0, vr(XO)))
    A("v_and_b32 %s, %s, %s" % (vr(XO + 1), sT3, vr(XO)))
    A("v_add_u32 %s, 0x1000, %s" % (vr(XO), vr(XO)))
    A("v_add_u32 %s, 0x1000, %s" % (vr(XO + 1), vr(XO + 1)))
    A("v_and_b32 %s, 3, %s" % (vT, vC))
    A("v_lshlrev_b32 %s, 4, %s" % (vT, vT))
    A("v_lshl_add_u32 %s, %s, 6, %s" % (vT, vG, vT))
    A("v_lshrrev_b32 %s, 2, %s" % (vP, vC))
    A("s_waitcnt lgkmcnt(0)")
    for i in range(4):
        A("v_mov_b32 %s, 0" % vr(ACCL + i))
        A("v_mov_b32 %s, 0" % vr(ACCH + i))
    A("v_mov_b32 %s, 0xff800000" % vM)
    A("v_mov_b32 %s, 0" % vL)
    A("s_barrier")
    stamp()
    A("ds_read_b128 %s, %s offset:%d" % (vr(S1, 4), vT, L_Q))
    A("s_waitcnt lgkmcnt(0)")
    for t in range(4):
        A("v_cmp_eq_u32 vcc, %d, %s" % (t, vP))
        for r in range(4):
            A("v_cndmask_b32 %s, 0, %s, vcc" % (vr(AQ + 4 * t + r), vr(S1 + r)))

    resc = []

    def load_tile(dst, va, sb):
        for u in range(4):
            A("global_load_dwordx4 %s, %s, %s offset:%d nt" % (vr(dst + 4 * u, 4), va, sb, 2048 * (u - 2)))

    def body(b, prefetch, nk, nv, tag):
        A("s_waitcnt vmcnt(%d)" % nk)
        for t in range(4):
            A("v_mfma_f32_16x16x32_bf16 %s, %s, %s, %s" % (vr(DQK, 4), vr(AQ + 4 * t, 4), vr(KB[b] + 4 * t, 4),
                                                         "0" if t == 0 else vr(DQK, 4)))
        if prefetch == "tail":
            load_tile(WT, vr(XO), sWO)
        elif prefetch:
            load_k(b)
        A("v_mov_b32_dpp %s, %s quad_perm:[0,0,0,0] %s" % (vT, vr(DQK), FULL))
        A("v_mov_b32_dpp %s, %s quad_perm:[2,2,2,2] %s" % (vP, vr(DQK + 2), FULL))
        A("v_add_f32_dpp %s, %s, %s quad_perm:[1,1,1,1] %s" % (vT, vr(DQK + 1), vT, FULL))
        A("v_add_f32_dpp %s, %s, %s quad_perm:[3,3,3,3] %s" % (vP, vr(DQK + 3), vP, FULL))
        A("v_add_f32 %s, %s, %s" % (vT, vT, vP))
        round_bf16(vT)
        A("v_mul_f32 %s, %s, %s" % (vT, f32(SCALE), vT))
        round_bf16(vT)
        A("v_cmp_gt_f32 vcc, %s, %s" % (vT, vM))
        A("s_cbranch_vccnz L_resc_%s" % tag)
        A.label("L_back_%s" % tag)
        resc.append(tag)
        A("v_sub_f32 %s, %s, %s" % (vP, vT, vM))
        A("v_mul_f32 %s, %s, %s" % (vP, f32(LOG2E), vP))
        A("v_exp_f32 %s, %s" % (vP, vP))
        A("v_add_f32 %s, %s, %s" % (vL, vL, vP))
        A("v_cvt_pk_bf16_f32 %s, %s, %s" % (vP, vP, vP))
        A("v_and_b32 %s, %s, %s" % (vr(S1), vP, vr(MASK)))
        A("v_and_b32 %s, %s, %s" % (vr(S1 + 1), vP, vr(MASK + 1)))
        A("v_and_b32_dpp %s, %s, %s row_ror:4 %s" % (vr(S1 + 2), vP, vr(MASK + 2), FULL))
        A("v_and_b32_dpp %s, %s, %s row_ror:4 %s" % (vr(S1 + 3), vP, vr(MASK + 3), FULL))
        A("v_and_b32_dpp %s, %s, %s row_ror:12 %s" % (vr(S2), vP, vr(MASK), FULL))
        A("v_and_b32_dpp %s, %s, %s row_ror:12 %s" % (vr(S2 + 1), vP, vr(MASK + 1), FULL))
        A("v_and_b32 %s, %s, %s" % (vr(S2 + 2), vP, vr(MASK + 2)))
        A("v_and_b32 %s, %s, %s" % (vr(S2 + 3), vP, vr(MASK + 3)))
        A("s_waitcnt vmcnt(%d)" % nv)
        A("v_mfma_f32_16x16x32_bf16 %s, %s, %s, %s" % (vr(ACCL, 4), vr(S1, 4), vr(VB[b], 4), vr(ACCL, 4)))
        A("v_mfma_f32_16x16x32_bf16 %s, %s, %s, %s" % (vr(ACCH, 4), vr(S1, 4), vr(VB[b] + 8, 4), vr(ACCH, 4)))
        A("v_mfma_f32_16x16x32_bf16 %s, %s, %s, %s" % (vr(ACCL, 4), vr(S2, 4), vr(VB[b] + 4, 4), vr(ACCL, 4)))
        A("v_mfma_f32_16x16x32_bf16 %s, %s, %s, %s" % (vr(ACCH, 4), vr(S2, 4), vr(VB[b] + 12, 4), vr(ACCH, 4)))
        if prefetch == "tail":
            load_tile(WT + 16, vr(XO + 1), sWD)
        elif prefetch:
            load_v(b)

    NP = NIT - NS
    trips = NP // NS
    rem = NP - trips * NS
    full = 4 * (2 * NS - 1)
    A("s_movk_i32 %s, %d" % (sCNT, trips))
    A.label("L_loop")
    for b in range(NS):
        body(b, True, full, full, "m%d" % b)
    A("s_sub_u32 %s, %s, 1" % (sCNT, sCNT))
    A("s_cmp_lg_u32 %s, 0" % sCNT)
    A("s_cbranch_scc1 L_loop")
    for i in range(rem):
        body(i % NS, True, full, full, "r%d" % i)
    for i in range(NS):
        b = (rem + i) % NS
        if i == 0:
            body(b, "tail", 8 * NS - 4, 8 * NS - 4, "d%d" % i)
        else:
            body(b, False, 8 * (NS - i) + 4, 8 * (NS - i), "d%d" % i)
    stamp()
    wave_sum(vL, vT, [4, 8])
    for i in range(4):
        A("v_permlane32_swap_b32 %s, %s" % (vr(ACCH + i), vr(S1 + i)))
    for i in range(4):
        A("v_add_f32 %s, %s, %s" % (vr(ACCL + i), vr(ACCL + i), vr(S1 + i)))
    A("s_lshl_b32 %s, %s, 10" % (sT0, sWAVE))
    A("v_lshl_add_u32 %s, %s, 1, %s" % (vT, vU0, sT0))
    A("v_lshl_add_u32 %s, %s, 4, %s" % (vP, vLANE, sT0))
    A("ds_write_b64 %s, %s offset:%d" % (vP, "v[6:7]", L_P3 + 8))
    A("s_mov_b32 exec_hi, 0")
    A("ds_write_b64 %s, %s offset:%d" % (vT, vr(ACCL, 2), L_P3))
    A("ds_write_b64 %s, %s offset:%d" % (vT, vr(ACCL + 2, 2), L_P3 + 16))
    A("s_mov_b64 exec, -1")
    A("s_lshl_b32 %s, %s, 6" % (sT0, sWAVE))
    A("v_lshl_add_u32 %s, %s, 4, %s" % (vT, vG, sT0))
    A("s_waitcnt lgkmcnt(0)")
    A("s_barrier")
    for (src_off, tile, dst_off, wait) in ((L_H, WT + 16, L_P1 + 512, 0), (L_O, WT, L_P1, None)):
        A("ds_read_b128 %s, %s offset:%d" % (vr(S1, 4), vT, src_off))
        A("s_waitcnt lgkmcnt(0)")
        for u in range(4):
            for r in range(4):
                A("v_and_b32 %s, %s, %s" % (vr(AQ + 4 * u + r), vr(S1 + u), vr(MASK + r)))
        if wait is not None:
            A("s_waitcnt vmcnt(%d)" % wait)
        for u in range(4):
            A("v_mfma_f32_16x16x32_bf16 %s, %s, %s, %s" % (vr(DQK, 4), vr(AQ + 4 * u, 4), vr(tile + 4 * u, 4),
                                                         "0" if u == 0 else vr(DQK, 4)))
        A("ds_write_b128 %s, %s offset:%d" % (vU1, vr(DQK, 4), dst_off))
        A("s_waitcnt lgkmcnt(0)")
        A("s_barrier")
    dump_stamps(nstamp[0])
    A("s_endpgm")
    for tag in resc:
        A.label("L_resc_%s" % tag)
        A("s_nop 7")
        A("v_max_f32_dpp %s, %s, %s row_ror:4 %s" % (vP, vT, vT, FULL))
        A("v_max_f32_dpp %s, %s, %s row_ror:8 %s" % (vP, vP, vP, FULL))
        A("v_mov_b32 %s, %s" % (vr(S1), vP))
        A("v_permlane16_swap_b32 %s, %s" % (vP, vr(S1)))
        A("v_max_f32 %s, %s, %s" % (vP, vP, vr(S1)))
        A("v_mov_b32 %s, %s" % (vr(S1), vP))
        A("v_permlane32_swap_b32 %s, %s" % (vP, vr(S1)))
        A("v_max3_f32 %s, %s, %s, %s" % (vP, vP, vr(S1), vM))
        A("v_sub_f32 %s, %s, %s" % (vr(S1), vM, vP))
        A("v_mul_f32 %s, %s, %s" % (vr(S1), f32(LOG2E), vr(S1)))
        A("v_exp_f32 %s, %s" % (vr(S1), vr(S1)))
        A("v_mov_b32 %s, %s" % (vM, vP))
        for i in range(4):
            A("v_mul_f32 %s, %s, %s" % (vr(ACCL + i), vr(ACCL + i), vr(S1)))
            A("v_mul_f32 %s, %s, %s" % (vr(ACCH + i), vr(ACCH + i), vr(S1)))
        A("v_mul_f32 %s, %s, %s" % (vL, vL, vr(S1)))
        A("s_branch L_back_%s" % tag)

    A.label("L_service")
    nstamp[0] = 1 if stamps else 0
    vL16, vL8, vX2, vX3, vXG, vDB, vRD = "v4", "v5", "v6", "v7", "v8", "v9", "v10"
    t0, t1, t2, t3 = "v12", "v13", "v14", "v15"
    R = 16
    XA, XB = "v24", "v25"
    E = 32
    nlab = [0]

    def spin_check(fail):
        A("s_sub_u32 %s, %s, 1" % (sSPIN, sSPIN))
        A("s_cmp_eq_u32 %s, 0" % sSPIN)
        A("s_cbranch_scc1 %s" % fail)

    def any_sentinel(regs):
        A("v_max3_u32 %s, %s, %s, %s" % (t0, regs[0], regs[1], regs[2]))
        k = 3
        while k + 1 < len(regs):
            A("v_max3_u32 %s, %s, %s, %s" % (t0, t0, regs[k], regs[k + 1]))
            k += 2
        if k < len(regs):
            A("v_max_u32 %s, %s, %s" % (t0, t0, regs[k]))
        A("v_cmp_eq_u32 vcc, -1, %s" % t0)

    def sum8_lds(off):
        for w in range(W):
            A("ds_read_b128 %s, %s offset:%d" % (vr(E + 4 * w, 4), vL16, L_P1 + 1536 * w + off))
        A("s_waitcnt lgkmcnt(%d)" % (W - 2))
        for i in range(4):
            A("v_add_f32 %s, %s, %s" % (vr(R + i), vr(E + i), vr(E + 4 + i)))
        for w in range(2, W):
            A("s_waitcnt lgkmcnt(%d)" % (W - 1 - w))
            for i in range(4):
                A("v_add_f32 %s, %s, %s" % (vr(R + i), vr(R + i), vr(E + 4 * w + i)))

    def combine8():
        m = [vr(E + 4 * k + 2) for k in range(8)]
        M = vr(R + 2)
        A("v_max3_f32 %s, %s, %s, %s" % (M, m[0], m[1], m[2]))
        A("v_max3_f32 %s, %s, %s, %s" % (t0, m[3], m[4], m[5]))
        A("v_max3_f32 %s, %s, %s, %s" % (M, M, m[6], m[7]))
        A("v_max_f32 %s, %s, %s" % (M, M, t0))
        for k in range(8):
            A("v_sub_f32 %s, %s, %s" % (m[k], m[k], M))
        for k in range(8):
            A("v_mul_f32 %s, %s, %s" % (m[k], f32(LOG2E), m[k]))
        for k in range(8):
            A("v_exp_f32 %s, %s" % (m[k], m[k]))
        for j in (0, 1, 3):
            A("v_mul_f32 %s, %s, %s" % (vr(R + j), m[0], vr(E + j)))
        for k in range(1, 8):
            for j in (0, 1, 3):
                A("v_fmac_f32 %s, %s, %s" % (vr(R + j), m[k], vr(E + 4 * k + j)))

    def canon(n=4):
        for i in range(n):
            A("v_min_u32 %s, -2, %s" % (vr(R + i), vr(R + i)))

    A("v_lshlrev_b32 %s, 4, %s" % (vL16, vLANE))
    A("v_lshlrev_b32 %s, 3, %s" % (vL8, vLANE))
    A("s_mov_b32 %s, %d" % (sSPIN, spin))
    A("s_lshl_b32 %s, s2, 10" % sT0)
    A("v_add_u32 %s, %s, %s" % (vX2, sT0, vL16))
    A("s_lshl_b32 %s, %s, 12" % (sT0, sH))
    A("s_lshl_b32 %s, %s, 9" % (sT1, sS))
    A("s_add_u32 %s, %s, %s" % (sT0, sT0, sT1))
    A("s_add_u32 %s, %s, 0x%x" % (sT0, sT0, X3A))
    A("v_and_b32 %s, 31, %s" % (t0, vLANE))
    A("v_lshlrev_b32 %s, 4, %s" % (t0, t0))
    A("v_lshrrev_b32 %s, 5, %s" % (t1, vLANE))
    A("v_lshl_add_u32 %s, %s, 17, %s" % (vX3, t1, t0))
    A("v_add_u32 %s, %s, %s" % (vX3, sT0, vX3))
    A("s_lshl_b32 %s, %s, 2" % (sT0, sH))
    A("v_mov_b32 %s, %s" % (vDB, sT0))
    for i in range(4):
        A("v_mov_b32 %s, -1" % vr(R + i))
    A("s_cmp_lt_u32 %s, 28" % sH)
    A("s_cselect_b32 %s, 64, 32" % sT1)
    A("v_cmp_gt_u32 vcc, %s, %s" % (sT1, vLANE))
    A("v_cndmask_b32 %s, 0, -1, vcc" % vr(R + 4))
    A("v_mov_b32 %s, %s" % (vr(R + 5), vr(R + 4)))
    A("v_mov_b32 %s, %s" % (vr(R + 6), vr(R + 4)))
    A("v_mov_b32 %s, %s" % (vr(R + 7), vr(R + 4)))
    A("v_add_u32 %s, 0x%x, %s" % (t2, X1B, vX2))
    A("v_add_u32 %s, 0x%x, %s" % (vX2, X2, vX2))
    A("s_lshl_b32 %s, s2, 9" % sT0)
    A("v_add_u32 %s, %s, %s" % (t3, sT0, vL16))
    A("s_waitcnt lgkmcnt(0)")
    A("global_store_dwordx4 %s, %s, %s sc1" % (vX2, vr(R, 4), sWS))
    A("global_store_dwordx4 %s, %s, %s sc1" % (t2, vr(R, 4), sWS))
    A("global_store_dwordx4 %s, %s, %s sc1" % (vX3, vr(R + 4, 4), sWS))
    A("s_lshl_b32 %s, %s, 12" % (sT0, sH))
    A("v_add_u32 %s, %s, %s" % (vXG, sT0, vL8))
    A("v_mov_b32 %s, 1" % t1)
    A("v_mov_b32 %s, 0" % vRD)
    A("s_barrier")
    stamp()
    sum8_lds(0)
    A("s_mov_b32 exec_hi, 0")
    A("global_store_dwordx4 %s, %s, %s sc1" % (t3, vr(R, 4), sWS))
    A("s_mov_b64 exec, 1")
    A("s_waitcnt vmcnt(0)")
    A("global_atomic_add %s, %s, %s" % (vDB, t1, sDBG))
    stamp()
    A.label("L_poll1")
    A("global_load_dword %s, %s, %s sc1" % (t0, vDB, sDBG))
    spin_check("L_svc_end")
    A("s_waitcnt vmcnt(0)")
    A("v_cmp_ne_u32 vcc, 8, %s" % t0)
    A("s_cbranch_vccnz L_poll1")
    A("s_mov_b64 exec, -1")
    stamp()
    for k in range(8):
        A("global_load_dwordx2 %s, %s, %s offset:%d sc1" % (vr(E + 2 * k, 2), vXG, sWS, X1 + 512 * k))
    A("v_lshlrev_b32 %s, 2, %s" % (t1, vLANE))
    A("s_waitcnt vmcnt(6)")
    A("v_add_f32 %s, %s, %s" % (vr(R), vr(E), vr(E + 2)))
    A("v_add_f32 %s, %s, %s" % (vr(R + 1), vr(E + 1), vr(E + 3)))
    for k in range(2, 8):
        A("s_waitcnt vmcnt(%d)" % (7 - k))
        A("v_add_f32 %s, %s, %s" % (vr(R), vr(R), vr(E + 2 * k)))
        A("v_add_f32 %s, %s, %s" % (vr(R + 1), vr(R + 1), vr(E + 2 * k + 1)))
    A("v_cvt_pk_bf16_f32 %s, %s, %s" % (t0, vr(R), vr(R + 1)))
    A("ds_write_b32 %s, %s offset:%d" % (t1, t0, L_Q))
    A("s_waitcnt lgkmcnt(0)")
    A("s_barrier")
    stamp()
    A("s_cmp_ge_u32 %s, 28" % sH)
    A("s_cbranch_scc1 L_noffn")
    sum8_lds(512)
    canon()
    A("global_store_dwordx4 %s, %s, %s sc1" % (t2, vr(R, 4), sWS))
    A("s_lshl_b32 %s, %s, 13" % (sT0, sH))
    A("s_add_u32 %s, %s, 0x%x" % (sT0, sT0, X1B + 4096))
    A("v_add_u32 %s, %s, %s" % (vXG, sT0, vL8))
    A.label("L_poll1b")
    for k in range(8):
        A("global_load_dwordx2 %s, %s, %s offset:%d sc1" % (vr(E + 4 * k, 2), vXG, sWS, 1024 * k - 4096))
        A("global_load_dwordx2 %s, %s, %s offset:%d sc1" % (vr(E + 4 * k + 2, 2), vXG, sWS, 1024 * k - 4096 + 512))
    spin_check("L_svc_end")
    A("s_waitcnt vmcnt(0)")
    any_sentinel([vr(E + i) for i in range(32)])
    A("s_cbranch_vccz L_got1b")
    A("s_sleep 8")
    A("s_branch L_poll1b")
    A.label("L_got1b")
    for i in range(4):
        A("v_add_f32 %s, %s, %s" % (vr(R + i), vr(E + i), vr(E + 4 + i)))
    for k in range(2, 8):
        for i in range(4):
            A("v_add_f32 %s, %s, %s" % (vr(R + i), vr(R + i), vr(E + 4 * k + i)))
    for i in range(4):
        round_bf16(vr(R + i))
    C1 = -2.0 * LOG2E * 0.7978845608028654
    for i, t in ((0, t0), (1, t1)):
        x = vr(R + i)
        A("v_mul_f32 %s, %s, %s" % (t, x, x))
        A("v_mul_f32 %s, %s, %s" % (t, f32(0.044715), t))
        A("v_fma_f32 %s, %s, %s, %s" % (t, t, x, x))
        A("v_mul_f32 %s, %s, %s" % (t, f32(C1), t))
        A("v_exp_f32 %s, %s" % (t, t))
        A("v_add_f32 %s, 1.0, %s" % (t, t))
        A("v_rcp_f32 %s, %s" % (t, t))
        A("v_mul_f32 %s, %s, %s" % (t, t, x))
        round_bf16(t)
        A("v_mul_f32 %s, %s, %s" % (t, t, vr(R + 2 + i)))
        A("v_cvt_pk_bf16_f32 %s, %s, %s" % (t, t, t))
    A("ds_write_b64 %s, v[12:13] offset:%d" % (vL8, L_H))
    A.label("L_noffn")
    stamp()
    A("s_cmp_ge_u32 %s, 4" % sH)
    A("s_cbranch_scc1 L_nored1")
    A("v_and_b32 %s, 31, %s" % (t2, vLANE))
    A("v_lshlrev_b32 %s, 2, %s" % (t2, t2))
    A.label("L_pollc")
    A("global_load_dword %s, %s, %s sc1" % (t0, t2, sDBG))
    spin_check("L_svc_end")
    A("s_waitcnt vmcnt(0)")
    A("v_cmp_ne_u32 vcc, 8, %s" % t0)
    A("s_cbranch_vccz L_gotc")
    A("s_sleep 8")
    A("s_branch L_pollc")
    A.label("L_gotc")
    A("s_lshl_b32 %s, %s, 7" % (sT0, sS))
    A("s_lshl_b32 %s, %s, 5" % (sT1, sH))
    A("s_add_u32 %s, %s, %s" % (sT0, sT0, sT1))
    A("v_and_b32 %s, 7, %s" % (t0, vLANE))
    A("v_lshrrev_b32 %s, 3, %s" % (t1, vLANE))
    A("v_lshlrev_b32 %s, 12, %s" % (vRD, t1))
    A("v_lshl_add_u32 %s, %s, 4, %s" % (vRD, t0, vRD))
    A("s_lshl_b32 %s, %s, 2" % (sT1, sT0))
    A("s_add_u32 %s, %s, 0x%x" % (sT1, sT1, X3A))
    A("v_add_u32 %s, %s, %s" % (vRD, sT1, vRD))
    A("v_and_b32 %s, 1, %s" % (t1, vG))
    A("v_lshl_add_u32 %s, %s, 2, %s" % (t0, t0, t1))
    A("v_add_u32 %s, %s, %s" % (t0, sT0, t0))
    A("v_lshlrev_b32 %s, 1, %s" % (vDB, t0))
    A("global_load_ushort %s, %s, %s" % (XA, vDB, sX))
    A("global_load_ushort %s, %s, %s offset:4" % (XB, vDB, sX))
    A.label("L_nored1")
    A("s_lshl_b32 %s, %s, 13" % (sT0, sH))
    A("s_add_u32 %s, %s, 0x%x" % (sT0, sT0, X2 + 4096))
    A("v_add_u32 %s, %s, %s" % (vXG, sT0, vL16))
    A("s_waitcnt vmcnt(0) lgkmcnt(0)")
    stamp()
    A("s_barrier")
    stamp()
    for w in range(W):
        A("ds_read_b128 %s, %s offset:%d" % (vr(E + 4 * w, 4), vL16, L_P3 + 1024 * w))
    A("s_waitcnt lgkmcnt(0)")
    combine8()
    canon()
    A("global_store_dwordx4 %s, %s, %s sc1" % (vX2, vr(R, 4), sWS))
    stamp()
    A.label("L_poll2")
    for k in range(8):
        A("global_load_dwordx4 %s, %s, %s offset:%d sc1" % (vr(E + 4 * k, 4), vXG, sWS, 1024 * k - 4096))
    spin_check("L_svc_end")
    A("s_waitcnt vmcnt(0)")
    any_sentinel([vr(E + i) for i in range(32)])
    A("s_cbranch_vccz L_got2")
    A("s_sleep 2")
    A("s_branch L_poll2")
    A.label("L_got2")
    stamp()
    combine8()
    A("v_rcp_f32 %s, %s" % (t0, vr(R + 3)))
    A("v_mul_f32 %s, %s, %s" % (t2, vr(R), t0))
    A("v_mul_f32 %s, %s, %s" % (t3, vr(R + 1), t0))
    A("v_cvt_pk_bf16_f32 %s, %s, %s" % (t2, t2, t2))
    A("v_cvt_pk_bf16_f32 %s, %s, %s" % (t3, t3, t3))
    A("ds_write_b64 %s, v[14:15] offset:%d" % (vL8, L_O))
    A("s_waitcnt lgkmcnt(0)")
    A("s_barrier")
    A("s_cmp_lt_u32 %s, 28" % sH)
    A("s_cselect_b32 %s, -1, 0" % sT1)
    A("s_barrier")
    sum8_lds(0)
    canon()
    A("s_mov_b32 exec_hi, %s" % sT1)
    A("global_store_dwordx4 %s, %s, %s sc1" % (vX3, vr(R, 4), sWS))
    A("s_mov_b64 exec, -1")
    stamp()
    A("s_cmp_ge_u32 %s, 4" % sH)
    A("s_cbranch_scc1 L_svc_end")
    A("v_add_u32 %s, 0x8000, %s" % (t1, vRD))
    A("v_add_u32 %s, 0x10000, %s" % (t2, vRD))
    A("v_add_u32 %s, 0x18000, %s" % (t3, vRD))
    A("v_add_u32 %s, 0x20000, %s" % (vr(R), vRD))
    A("v_add_u32 %s, 0x20000, %s" % (vr(R + 1), t1))
    A("v_add_u32 %s, 0x20000, %s" % (vr(R + 2), t2))
    A("v_add_u32 %s, 0x20000, %s" % (vr(R + 3), t3))
    A.label("L_poll3")
    for k, a in enumerate((vRD, t1, t2, t3, vr(R), vr(R + 1), vr(R + 2), vr(R + 3))):
        A("global_load_dwordx4 %s, %s, %s sc1" % (vr(E + 4 * k, 4), a, sWS))
    spin_check("L_svc_end")
    A("s_waitcnt vmcnt(0)")
    any_sentinel([vr(E + i) for i in range(32)])
    A("s_cbranch_vccz L_got3")
    A("s_sleep 2")
    A("s_branch L_poll3")
    A.label("L_got3")
    stamp()
    for half in (0, 16):
        for i in range(4):
            A("v_add_f32 %s, %s, %s" % (vr(E + half + i), vr(E + half + i), vr(E + half + 4 + i)))
            A("v_add_f32 %s, %s, %s" % (vr(E + half + 8 + i), vr(E + half + 8 + i), vr(E + half + 12 + i)))
        for i in range(4):
            A("v_add_f32 %s, %s, %s" % (vr(E + half + i), vr(E + half + i), vr(E + half + 8 + i)))
    for i in range(4):
        A("v_permlane32_swap_b32 %s, %s" % (vr(E + i), vr(E + 16 + i)))
    for i in range(4):
        A("v_add_f32 %s, %s, %s" % (vr(E + i), vr(E + i), vr(E + 16 + i)))
    A("v_permlane16_swap_b32 %s, %s" % (vr(E), vr(E + 1)))
    A("v_permlane16_swap_b32 %s, %s" % (vr(E + 2), vr(E + 3)))
    A("v_add_f32 %s, %s, %s" % (t0, vr(E), vr(E + 1)))
    A("v_add_f32 %s, %s, %s" % (t1, vr(E + 2), vr(E + 3)))
    A("v_add_f32_dpp %s, %s, %s row_ror:8 %s" % (t0, t0, t0, FULL))
    A("v_add_f32_dpp %s, %s, %s row_ror:8 %s" % (t1, t1, t1, FULL))
    round_bf16(t0)
    round_bf16(t1)
    A("v_permlane32_swap_b32 %s, %s" % (t0, t2))
    A("v_permlane32_swap_b32 %s, %s" % (t1, t3))
    A("v_lshlrev_b32 %s, 16, %s" % (XA, XA))
    A("v_lshlrev_b32 %s, 16, %s" % (XB, XB))
    A("v_add_f32 %s, %s, %s" % (t0, t0, XA))
    A("v_add_f32 %s, %s, %s" % (t1, t1, XB))
    round_bf16(t0)
    round_bf16(t1)
    A("v_add_f32 %s, %s, %s" % (t0, t0, t2))
    A("v_add_f32 %s, %s, %s" % (t1, t1, t3))
    A("v_cvt_pk_bf16_f32 %s, %s, %s" % (t0, t0, t0))
    A("v_cvt_pk_bf16_f32 %s, %s, %s" % (t1, t1, t1))
    A("s_mov_b64 exec, 0x00ff00ff")
    A("global_store_short %s, %s, %s" % (vDB, t0, sOUT))
    A("global_store_short %s, %s, %s offset:4" % (vDB, t1, sOUT))
    stamp()
    A.label("L_svc_end")
    dump_stamps(14)
    A.label("L_end")
    A("s_endpgm")

    errs = A.verify_edges()
    if errs:
        raise RuntimeError("\n".join(errs))
    mv, ms = A.max_regs()
    nv = mv + 1
    acc = (nv + 3) // 4 * 4
    out = HEADER
    out += "; @launch grid=(256,1,1) block=(%d,1,1) lds=%d\n" % (64 * (W + 1), LDS_BYTES)
    out += ".amdgcn_target \"amdgcn-amd-amdhsa--gfx950\"\n.text\n"
    out += ".globl %s_kernel\n.p2align 8\n.type %s_kernel,@function\n%s_kernel:\n" % (NAME, NAME, NAME)
    out += A.text()
    out += """.section .rodata,"a"
.p2align 6
.amdhsa_kernel %s_kernel
  .amdhsa_next_free_vgpr %d
  .amdhsa_next_free_sgpr %d
  .amdhsa_accum_offset %d
  .amdhsa_group_segment_fixed_size 0
  .amdhsa_kernarg_size 96
  .amdhsa_user_sgpr_count 2
  .amdhsa_user_sgpr_kernarg_segment_ptr 1
  .amdhsa_system_sgpr_workgroup_id_x 1
  .amdhsa_float_denorm_mode_32 3
  .amdhsa_float_denorm_mode_16_64 3
.end_amdhsa_kernel
""" % (NAME, nv, ms + 1, acc)
    return out


if __name__ == "__main__":
    ap = argparse.ArgumentParser()
    ap.add_argument("-o", default="cdna_kernels/%s.s" % NAME)
    ap.add_argument("--ns", type=int, default=2)
    ap.add_argument("--stamps", action="store_true")
    a = ap.parse_args()
    txt = gen(NS=a.ns, stamps=a.stamps)
    open(a.o, "w").write(txt)
    print("wrote", a.o, len(txt), "bytes")
```

```python
import sys, struct, argparse
from asmlib import Asm

NAME = "parallel_sum__mha_block_cached__geglu_ffn__decode"

HEADER = """; Kernarg layout for this problem (96 bytes, ptrs only, base s[0:1]):
"""


def f32(x):
    return "0x%08x" % struct.unpack("<I", struct.pack("<f", x))[0]


LOG2E = 1.4426950408889634
SCALE = 128 ** -0.5
FULL = "row_mask:0xf bank_mask:0xf"

X1 = 0x200000
EPOCH = 0x38000
X1B = 0x40000
X2 = 0x80000
X3A = 0xC0000
X3B = 0xE0000
CNT = 0x30000
TS = 0x100000

L_P1 = 0
L_Q = 12288
L_H = 12544
L_O = 13056
L_P3 = 13568
LDS_BYTES = 13568 + 8192


def vr(a, n=1):
    return "v%d" % a if n == 1 else "v[%d:%d]" % (a, a + n - 1)


def gen(W=8, NS=2, C=8, stamps=False, spin=1 << 20, dyn=True, rot=871):
    assert W == 8
    A = Asm()
    NIT = 4096 // (16 * W)
    STEP = W * 4096
    sX, sK, sV, sWQ, sWO, sWG, sWU, sWD, sOUT, sDBG, sWS = (
        "s[4:5]", "s[6:7]", "s[8:9]", "s[10:11]", "s[12:13]", "s[16:17]", "s[18:19]",
        "s[20:21]", "s[22:23]", "s[24:25]", "s[26:27]")
    sWAVE, sH, sS, sT0, sT1, sT2, sT3, sCNT, sSPIN = "s28", "s29", "s30", "s31", "s32", "s33", "s34", "s35", "s36"
    nstamp = [0]

    def stamp():
        if stamps:
            k = nstamp[0]
            A("s_memrealtime s[%d:%d]" % (64 + 2 * k, 65 + 2 * k))
            A("s_waitcnt lgkmcnt(0)")
            nstamp[0] += 1

    def dump_stamps(n):
        if not stamps:
            return
        A("s_waitcnt vmcnt(0) lgkmcnt(0)")
        A("s_mov_b64 exec, 1")
        A("s_lshl_b32 %s, s2, 4" % sT0)
        A("s_add_u32 %s, %s, %s" % (sT0, sT0, sWAVE))
        A("s_lshl_b32 %s, %s, 8" % (sT0, sT0))
        A("s_add_u32 %s, %s, 0x%x" % (sT0, sT0, TS))
        A("v_mov_b32 v1, %s" % sT0)
        for k in range(n):
            A("v_mov_b32 v2, s%d" % (64 + 2 * k))
            A("v_mov_b32 v3, s%d" % (65 + 2 * k))
            A("global_store_dwordx2 v1, v[2:3], %s offset:%d" % (sWS, 8 * k))
        A("s_getreg_b32 %s, hwreg(HW_REG_XCC_ID)" % sT1)
        A("s_getreg_b32 %s, hwreg(HW_REG_HW_ID)" % sT2)
        A("v_mov_b32 v2, %s" % sT1)
        A("v_mov_b32 v3, %s" % sT2)
        A("global_store_dwordx2 v1, v[2:3], %s offset:248" % sWS)

    def round_bf16(v):
        A("v_cvt_pk_bf16_f32 %s, %s, %s" % (v, v, v))
        A("v_lshlrev_b32 %s, 16, %s" % (v, v))

    def wave_sum(v, t, rows_uniform_from=None):
        steps = [8, 4, 2, 1] if rows_uniform_from is None else rows_uniform_from
        for r in steps:
            A("v_add_f32_dpp %s, %s, %s row_ror:%d %s" % (v, v, v, r, FULL))
        A("v_mov_b32 %s, %s" % (t, v))
        A("v_permlane16_swap_b32 %s, %s" % (v, t))
        A("v_add_f32 %s, %s, %s" % (v, v, t))
        A("v_mov_b32 %s, %s" % (t, v))
        A("v_permlane32_swap_b32 %s, %s" % (v, t))
        A("v_add_f32 %s, %s, %s" % (v, v, t))

    def make_masks(MASK, vC, t):
        A("v_and_b32 %s, 1, %s" % (t[0], vC))
        A("v_lshlrev_b32 %s, 4, %s" % (t[0], t[0]))
        A("v_mov_b32 %s, 0xffff" % t[1])
        A("v_lshlrev_b32 %s, %s, %s" % (t[1], t[0], t[1]))
        A("v_bfe_u32 %s, %s, 1, 2" % (t[0], vC))
        for r in range(4):
            A("v_cmp_eq_u32 vcc, %d, %s" % (r, t[0]))
            A("v_cndmask_b32 %s, 0, %s, vcc" % (vr(MASK + r), t[1]))

    A("s_cmp_ge_u32 s2, 256")
    A("s_cbranch_scc1 L_end")
    A("s_load_dwordx16 s[4:19], s[0:1], 0")
    A("s_load_dwordx8 s[20:27], s[0:1], 64")
    stamp_entry = None
    if stamps:
        A("s_memrealtime s[64:65]")
        nstamp[0] = 1
    A("v_lshrrev_b32 v1, 6, v0")
    A("s_lshr_b32 %s, s2, 3" % sH)
    A("v_readfirstlane_b32 %s, v1" % sWAVE)
    A("s_and_b32 %s, s2, 7" % sS)
    A("v_and_b32 v2, 15, v0")
    A("v_bfe_u32 v3, v0, 4, 2")
    A("v_and_b32 v1, 63, v0")
    A("s_cmp_eq_u32 %s, %d" % (sWAVE, W))
    A("s_cbranch_scc1 L_service")

    vLANE, vC, vG = "v1", "v2", "v3"
    vKO, vVO = "v4", "v5"
    vM, vL, vT, vP, vU0, vU1 = "v6", "v7", "v8", "v9", "v10", "v11"
    MASK = 12
    AQ = 16
    ACCL, ACCH, DQK = 32, 36, 40
    S1, S2 = 44, 48
    KB = [52 + 32 * i for i in range(NS)]
    VB = [68 + 32 * i for i in range(NS)]
    WT = 52 + 32 * NS
    XO = WT + 48
    vAT, vCA, vONE = vr(WT + 32), vr(WT + 33), vr(WT + 34)
    sWID, sFLAG, sROT = "s37", "s38", "s39"
    sCUR = ["s%d" % (48 + b) for b in range(NS)]
    sOFF = ["s%d" % (52 + b) for b in range(NS)]
    vXS, vXOo, vWQo, vWGo = vM, vL, vT, vP

    A("v_lshlrev_b32 %s, 5, %s" % (vXS, vLANE))
    A("s_lshl_b32 %s, %s, 7" % (sT0, sS))
    A("s_lshl_b32 %s, %s, 4" % (sT1, sWAVE))
    A("s_add_u32 %s, %s, %s" % (sT0, sT0, sT1))
    A("v_lshl_add_u32 %s, %s, 2, %s" % (vU0, vG, sT0))
    A("v_lshlrev_b32 %s, 1, %s" % (vXOo, vU0))
    A("s_lshl_b32 %s, %s, 8" % (sT1, sH))
    A("v_lshl_add_u32 %s, %s, 4, %s" % (vU1, vC, sT1))
    A("v_lshl_add_u32 %s, %s, 13, %s" % (vWQo, vU0, vU1))
    A("s_movk_i32 %s, 7168" % sT2)
    A("s_cmp_lt_u32 %s, 28" % sH)
    A("s_cselect_b32 %s, %s, 0" % (sT2, sT2))
    A("s_cselect_b32 %s, -1, 0" % sT3)
    A("v_mul_u32_u24 %s, %s, %s" % (vWGo, sT2, vU0))
    A("v_and_b32 %s, %s, %s" % (vU1, sT3, vU1))
    A("v_add_u32 %s, %s, %s" % (vWGo, vWGo, vU1))
    A("v_lshlrev_b32 %s, 10, %s" % (vVO, vG))
    A("v_lshl_add_u32 %s, %s, 4, %s" % (vVO, vC, vVO))
    A("v_bfe_u32 %s, v0, 2, 2" % vU0)
    A("v_and_b32 %s, 3, v0" % vU1)
    A("v_lshlrev_b32 %s, 8, %s" % (vKO, vU0))
    A("v_lshl_add_u32 %s, %s, 6, %s" % (vKO, vG, vKO))
    A("v_lshl_add_u32 %s, %s, 4, %s" % (vKO, vU1, vKO))
    A("s_lshl_b32 %s, %s, 3" % (sWID, sS))
    A("s_add_u32 %s, %s, %s" % (sWID, sWID, sWAVE))
    A("s_lshl_b32 %s, %s, 23" % (sT0, sH))
    A("s_waitcnt lgkmcnt(0)")
    A("global_load_dwordx4 %s, %s, %s" % (vr(S1, 4), vXS, sX))
    A("global_load_dwordx4 %s, %s, %s offset:16" % (vr(S2, 4), vXS, sX))
    A("global_load_dwordx2 %s, %s, %s" % (vr(XO, 2), vXOo, sX))
    for u in range(4):
        A("global_load_dwordx4 %s, %s, %s nt" % (vr(WT + 4 * u, 4), vWQo, sWQ))
        if u < 3:
            A("v_add_u32 %s, 0x2000, %s" % (vWQo, vWQo))
    A("s_add_u32 s40, s6, %s" % sT0)
    A("s_addc_u32 s41, s7, 0")
    A("s_mov_b32 s42, 0x800000")
    A("s_mov_b32 s43, 0x20000")
    A("s_add_u32 s44, s8, %s" % sT0)
    A("s_addc_u32 s45, s9, 0")
    A("s_mov_b32 s46, 0x800000")
    A("s_mov_b32 s47, 0x20000")

    def load_w(dst, sb):
        A("v_mov_b32 %s, %s" % (vr(DQK), vWGo))
        for u in range(4):
            A("global_load_dwordx4 %s, %s, %s nt" % (vr(dst + 4 * u, 4), vr(DQK), sb))
            if u < 3:
                A("v_add_u32 %s, %s, %s" % (vr(DQK), sT2, vr(DQK)))

    def load_k(b, soff):
        for t in range(4):
            A("buffer_load_dwordx4 %s, %s, s[40:43], %s offen offset:%d nt" % (vr(KB[b] + 4 * t, 4), vKO, soff, 1024 * t))

    def load_v(b, soff):
        for u in range(4):
            A("buffer_load_dwordx4 %s, %s, s[44:47], %s offen offset:%d nt" % (vr(VB[b] + 4 * u, 4), vVO, soff, 256 * u))

    make_masks(MASK, vC, [vU0, vU1])
    def chunk_off(b):
        A("s_add_u32 %s, %s, %s" % (sOFF[b], sCUR[b], sROT))
        A("s_and_b32 %s, %s, 2047" % (sOFF[b], sOFF[b]))
        A("s_lshl_b32 %s, %s, 12" % (sOFF[b], sOFF[b]))

    A("s_mul_i32 %s, %s, %d" % (sROT, sH, rot))
    for b in range(NS):
        A("s_add_u32 %s, %s, %d" % (sCUR[b], sWID, 64 * b))
        chunk_off(b)
    A("s_waitcnt vmcnt(4)")
    stamp()
    load_w(WT + 16, sWG)
    for i in range(8):
        src = vr(S1 + i)
        A("v_lshlrev_b32 %s, 16, %s" % (vr(AQ + 2 * i), src))
        A("v_and_b32 %s, 0xffff0000, %s" % (vr(AQ + 2 * i + 1), src))
    A("v_add_f32 %s, %s, %s" % (vM, vr(AQ), vr(AQ + 1)))
    A("v_add_f32 %s, %s, %s" % (vL, vr(AQ + 2), vr(AQ + 3)))
    for i in range(4, 16, 2):
        A("v_add_f32 %s, %s, %s" % (vM, vM, vr(AQ + i)))
        A("v_add_f32 %s, %s, %s" % (vL, vL, vr(AQ + i + 1)))
    A("v_add_f32 %s, %s, %s" % (vM, vM, vL))
    wave_sum(vM, vL)
    A("v_mul_f32 %s, %s, %s" % (vM, f32(1.0 / 1024), vM))
    for i in range(16):
        A("v_sub_f32 %s, %s, %s" % (vr(AQ + i), vr(AQ + i), vM))
    A("v_mul_f32 %s, %s, %s" % (vT, vr(AQ), vr(AQ)))
    A("v_mul_f32 %s, %s, %s" % (vL, vr(AQ + 1), vr(AQ + 1)))
    for i in range(2, 16, 2):
        A("v_fmac_f32 %s, %s, %s" % (vT, vr(AQ + i), vr(AQ + i)))
        A("v_fmac_f32 %s, %s, %s" % (vL, vr(AQ + i + 1), vr(AQ + i + 1)))
    A("v_add_f32 %s, %s, %s" % (vT, vT, vL))
    wave_sum(vT, vL)
    A("v_mul_f32 %s, %s, %s" % (vT, f32(1.0 / 1024), vT))
    round_bf16(vM)
    round_bf16(vT)
    A("v_add_f32 %s, %s, %s" % (vT, f32(1e-5), vT))
    round_bf16(vT)
    A("v_sqrt_f32 %s, %s" % (vT, vT))
    round_bf16(vT)
    A("v_rcp_f32 %s, %s" % (vT, vT))
    xo = [vr(S1 + i) for i in range(4)]
    A("v_lshlrev_b32 %s, 16, %s" % (xo[0], vr(XO)))
    A("v_and_b32 %s, 0xffff0000, %s" % (xo[1], vr(XO)))
    A("v_lshlrev_b32 %s, 16, %s" % (xo[2], vr(XO + 1)))
    A("v_and_b32 %s, 0xffff0000, %s" % (xo[3], vr(XO + 1)))
    for u in range(4):
        A("v_sub_f32 %s, %s, %s" % (xo[u], xo[u], vM))
    for u in range(4):
        A("v_cvt_pk_bf16_f32 %s, %s, %s" % (xo[u], xo[u], xo[u]))
    for u in range(4):
        A("v_lshlrev_b32 %s, 16, %s" % (xo[u], xo[u]))
    for u in range(4):
        A("v_mul_f32 %s, %s, %s" % (xo[u], xo[u], vT))
    for u in range(4):
        A("v_cvt_pk_bf16_f32 %s, %s, %s" % (xo[u], xo[u], xo[u]))
    for u in range(4):
        for r in range(4):
            A("v_and_b32 %s, %s, %s" % (vr(AQ + 4 * u + r), xo[u], vr(MASK + r)))
    A("v_and_b32 %s, 1, %s" % (vU0, vG))
    A("v_lshlrev_b32 %s, 4, %s" % (vU0, vU0))
    A("v_lshl_add_u32 %s, %s, 5, %s" % (vU0, vC, vU0))
    A("s_mul_i32 %s, %s, 1536" % (sT0, sWAVE))
    A("v_add_u32 %s, %s, %s" % (vU1, sT0, vU0))
    A("s_waitcnt vmcnt(4)")
    load_w(WT + 32, sWU)
    for u in range(4):
        A("v_mfma_f32_16x16x32_bf16 %s, %s, %s, %s" % (vr(DQK, 4), vr(AQ + 4 * u, 4), vr(WT + 4 * u, 4),
                                                     "0" if u == 0 else vr(DQK, 4)))
    A("ds_write_b128 %s, %s offset:%d" % (vU1, vr(DQK, 4), L_P1))
    A("s_waitcnt lgkmcnt(0)")
    stamp()
    A("s_barrier")
    A("s_waitcnt vmcnt(4)")
    load_k(0, sOFF[0])
    A("s_waitcnt vmcnt(4)")
    load_v(0, sOFF[0])
    for u in range(4):
        A("v_mfma_f32_16x16x32_bf16 %s, %s, %s, %s" % (vr(ACCL, 4), vr(AQ + 4 * u, 4), vr(WT + 16 + 4 * u, 4),
                                                     "0" if u == 0 else vr(ACCL, 4)))
        A("v_mfma_f32_16x16x32_bf16 %s, %s, %s, %s" % (vr(ACCH, 4), vr(AQ + 4 * u, 4), vr(WT + 32 + 4 * u, 4),
                                                     "0" if u == 0 else vr(ACCH, 4)))
    A("ds_write_b128 %s, %s offset:%d" % (vU1, vr(ACCL, 4), L_P1 + 512))
    A("ds_write_b128 %s, %s offset:%d" % (vU1, vr(ACCH, 4), L_P1 + 1024))
    A("s_lshl_b32 %s, %s, 7" % (sT0, sH))
    A("s_lshl_b32 %s, %s, 4" % (sT1, sWAVE))
    A("s_add_u32 %s, %s, %s" % (sT0, sT0, sT1))
    A("v_lshl_add_u32 %s, %s, 2, %s" % (vr(XO), vG, sT0))
    A("v_lshlrev_b32 %s, 11, %s" % (vr(XO), vr(XO)))
    A("s_lshl_b32 %s, %s, 8" % (sT0, sS))
    A("v_lshl_add_u32 %s, %s, 4, %s" % (vr(XO), vC, vr(XO)))
    A("v_add_u32 %s, %s, %s" % (vr(XO), sT0, vr(XO)))
    A("v_and_b32 %s, %s, %s" % (vr(XO + 1), sT3, vr(XO)))
    A("v_add_u32 %s, 0x1000, %s" % (vr(XO), vr(XO)))
    A("v_add_u32 %s, 0x1000, %s" % (vr(XO + 1), vr(XO + 1)))
    A("v_and_b32 %s, 3, %s" % (vT, vC))
    A("v_lshlrev_b32 %s, 4, %s" % (vT, vT))
    A("v_lshl_add_u32 %s, %s, 6, %s" % (vT, vG, vT))
    A("v_lshrrev_b32 %s, 2, %s" % (vP, vC))
    A("s_waitcnt lgkmcnt(0)")
    for i in range(4):
        A("v_mov_b32 %s, 0" % vr(ACCL + i))
        A("v_mov_b32 %s, 0" % vr(ACCH + i))
    A("v_mov_b32 %s, 0xff800000" % vM)
    A("v_mov_b32 %s, 0" % vL)
    A("s_sub_u32 %s, %s, 64" % (sT0, sWID))
    A("v_mov_b32 %s, %s" % (vAT, sT0))
    A("s_lshl_b32 %s, %s, 8" % (sT0, sH))
    A("s_add_u32 %s, %s, 0x%x" % (sT0, sT0, CNT))
    A("v_mov_b32 %s, %s" % (vCA, sT0))
    A("v_mov_b32 %s, 1" % vONE)
    A("s_mov_b32 %s, 0" % sFLAG)
    for b in range(1, NS):
        A("s_waitcnt vmcnt(4)")
        load_k(b, sOFF[b])
        A("s_waitcnt vmcnt(4)")
        load_v(b, sOFF[b])
    A("s_barrier")
    stamp()
    A("ds_read_b128 %s, %s offset:%d" % (vr(S1, 4), vT, L_Q))
    A("s_waitcnt lgkmcnt(0)")
    for t in range(4):
        A("v_cmp_eq_u32 vcc, %d, %s" % (t, vP))
        for r in range(4):
            A("v_cndmask_b32 %s, 0, %s, vcc" % (vr(AQ + 4 * t + r), vr(S1 + r)))

    resc = []

    def load_tile(dst, va, sb):
        for u in range(4):
            A("global_load_dwordx4 %s, %s, %s offset:%d nt" % (vr(dst + 4 * u, 4), va, sb, 2048 * (u - 2)))

    assert NS == 2
    tails = []

    def body(b):
        tag = "m%d" % b
        A("s_cmp_ge_u32 %s, 2048" % sCUR[b])
        A("s_cbranch_scc1 L_exit")
        A("s_waitcnt vmcnt(12)")
        for t in range(4):
            A("v_mfma_f32_16x16x32_bf16 %s, %s, %s, %s" % (vr(DQK, 4), vr(AQ + 4 * t, 4), vr(KB[b] + 4 * t, 4),
                                                         "0" if t == 0 else vr(DQK, 4)))
        A("s_movk_i32 %s, 2048" % sCUR[b])
        A("s_cmp_lg_u32 %s, 0" % sFLAG)
        A("s_cbranch_scc1 L_skipk_%s" % tag)
        A("s_waitcnt vmcnt(%d)" % (C - 4))
        A("v_readfirstlane_b32 %s, %s" % (sCUR[b], vAT))
        A("s_add_u32 %s, %s, %d" % (sCUR[b], sCUR[b], 64 * (NS + 1)))
        A("s_cmp_ge_u32 %s, 2048" % sCUR[b])
        A("s_cbranch_scc1 L_tail_%s" % tag)
        tails.append(tag)
        chunk_off(b)
        if dyn:
            A("s_mov_b64 exec, 1")
            A("global_atomic_add %s, %s, %s, %s sc0" % (vAT, vCA, vONE, sWS))
            A("s_mov_b64 exec, -1")
        else:
            A("v_add_u32 %s, 64, %s" % (vAT, vAT))
        load_k(b, sOFF[b])
        A.label("L_skipk_%s" % tag)
        A("s_nop 4")
        A("v_mov_b32_dpp %s, %s quad_perm:[0,0,0,0] %s" % (vT, vr(DQK), FULL))
        A("v_mov_b32_dpp %s, %s quad_perm:[2,2,2,2] %s" % (vP, vr(DQK + 2), FULL))
        A("v_add_f32_dpp %s, %s, %s quad_perm:[1,1,1,1] %s" % (vT, vr(DQK + 1), vT, FULL))
        A("v_add_f32_dpp %s, %s, %s quad_perm:[3,3,3,3] %s" % (vP, vr(DQK + 3), vP, FULL))
        A("v_add_f32 %s, %s, %s" % (vT, vT, vP))
        round_bf16(vT)
        A("v_mul_f32 %s, %s, %s" % (vT, f32(SCALE), vT))
        round_bf16(vT)
        A("v_cmp_gt_f32 vcc, %s, %s" % (vT, vM))
        A("s_cbranch_vccnz L_resc_%s" % tag)
        A.label("L_back_%s" % tag)
        resc.append(tag)
        A("v_sub_f32 %s, %s, %s" % (vP, vT, vM))
        A("v_mul_f32 %s, %s, %s" % (vP, f32(LOG2E), vP))
        A("v_exp_f32 %s, %s" % (vP, vP))
        A("v_add_f32 %s, %s, %s" % (vL, vL, vP))
        A("v_cvt_pk_bf16_f32 %s, %s, %s" % (vP, vP, vP))
        A("v_and_b32 %s, %s, %s" % (vr(S1), vP, vr(MASK)))
        A("v_and_b32 %s, %s, %s" % (vr(S1 + 1), vP, vr(MASK + 1)))
        A("v_and_b32_dpp %s, %s, %s row_ror:4 %s" % (vr(S1 + 2), vP, vr(MASK + 2), FULL))
        A("v_and_b32_dpp %s, %s, %s row_ror:4 %s" % (vr(S1 + 3), vP, vr(MASK + 3), FULL))
        A("v_and_b32_dpp %s, %s, %s row_ror:12 %s" % (vr(S2), vP, vr(MASK), FULL))
        A("v_and_b32_dpp %s, %s, %s row_ror:12 %s" % (vr(S2 + 1), vP, vr(MASK + 1), FULL))
        A("v_and_b32 %s, %s, %s" % (vr(S2 + 2), vP, vr(MASK + 2)))
        A("v_and_b32 %s, %s, %s" % (vr(S2 + 3), vP, vr(MASK + 3)))
        A("s_waitcnt vmcnt(8)")
        A("v_mfma_f32_16x16x32_bf16 %s, %s, %s, %s" % (vr(ACCL, 4), vr(S1, 4), vr(VB[b], 4), vr(ACCL, 4)))
        A("v_mfma_f32_16x16x32_bf16 %s, %s, %s, %s" % (vr(ACCH, 4), vr(S1, 4), vr(VB[b] + 8, 4), vr(ACCH, 4)))
        A("v_mfma_f32_16x16x32_bf16 %s, %s, %s, %s" % (vr(ACCL, 4), vr(S2, 4), vr(VB[b] + 4, 4), vr(ACCL, 4)))
        A("v_mfma_f32_16x16x32_bf16 %s, %s, %s, %s" % (vr(ACCH, 4), vr(S2, 4), vr(VB[b] + 12, 4), vr(ACCH, 4)))
        A("s_cmp_lg_u32 %s, 0" % sFLAG)
        A("s_cbranch_scc1 L_skipv_%s" % tag)
        A("s_waitcnt vmcnt(%d)" % (C - 4))
        load_v(b, sOFF[b])
        A.label("L_skipv_%s" % tag)

    A.label("L_loop")
    for b in range(NS):
        body(b)
    A("s_branch L_loop")
    for tag in tails:
        A.label("L_tail_%s" % tag)
        load_tile(WT, vr(XO), sWO)
        load_tile(WT + 16, vr(XO + 1), sWD)
        A("s_mov_b32 %s, 1" % sFLAG)
        A("s_branch L_skipk_%s" % tag)
    A.label("L_exit")
    A("s_nop 7")
    stamp()
    wave_sum(vL, vT, [4, 8])
    for i in range(4):
        A("v_permlane32_swap_b32 %s, %s" % (vr(ACCH + i), vr(S1 + i)))
    for i in range(4):
        A("v_add_f32 %s, %s, %s" % (vr(ACCL + i), vr(ACCL + i), vr(S1 + i)))
    A("s_lshl_b32 %s, %s, 10" % (sT0, sWAVE))
    A("v_lshl_add_u32 %s, %s, 1, %s" % (vT, vU0, sT0))
    A("v_lshl_add_u32 %s, %s, 4, %s" % (vP, vLANE, sT0))
    A("ds_write_b64 %s, %s offset:%d" % (vP, "v[6:7]", L_P3 + 8))
    A("s_mov_b32 exec_hi, 0")
    A("ds_write_b64 %s, %s offset:%d" % (vT, vr(ACCL, 2), L_P3))
    A("ds_write_b64 %s, %s offset:%d" % (vT, vr(ACCL + 2, 2), L_P3 + 16))
    A("s_mov_b64 exec, -1")
    A("s_lshl_b32 %s, %s, 6" % (sT0, sWAVE))
    A("v_lshl_add_u32 %s, %s, 4, %s" % (vT, vG, sT0))
    A("s_waitcnt lgkmcnt(0)")
    A("s_barrier")
    for (src_off, tile, dst_off, wait) in ((L_H, WT + 16, L_P1 + 512, 0), (L_O, WT, L_P1, None)):
        A("ds_read_b128 %s, %s offset:%d" % (vr(S1, 4), vT, src_off))
        A("s_waitcnt lgkmcnt(0)")
        for u in range(4):
            for r in range(4):
                A("v_and_b32 %s, %s, %s" % (vr(AQ + 4 * u + r), vr(S1 + u), vr(MASK + r)))
        if wait is not None:
            A("s_waitcnt vmcnt(%d)" % wait)
        for u in range(4):
            A("v_mfma_f32_16x16x32_bf16 %s, %s, %s, %s" % (vr(DQK, 4), vr(AQ + 4 * u, 4), vr(tile + 4 * u, 4),
                                                         "0" if u == 0 else vr(DQK, 4)))
        A("ds_write_b128 %s, %s offset:%d" % (vU1, vr(DQK, 4), dst_off))
        A("s_waitcnt lgkmcnt(0)")
        A("s_barrier")
    dump_stamps(nstamp[0])
    A("s_endpgm")
    for tag in resc:
        A.label("L_resc_%s" % tag)
        A("s_nop 7")
        A("v_max_f32_dpp %s, %s, %s row_ror:4 %s" % (vP, vT, vT, FULL))
        A("v_max_f32_dpp %s, %s, %s row_ror:8 %s" % (vP, vP, vP, FULL))
        A("v_mov_b32 %s, %s" % (vr(S1), vP))
        A("v_permlane16_swap_b32 %s, %s" % (vP, vr(S1)))
        A("v_max_f32 %s, %s, %s" % (vP, vP, vr(S1)))
        A("v_mov_b32 %s, %s" % (vr(S1), vP))
        A("v_permlane32_swap_b32 %s, %s" % (vP, vr(S1)))
        A("v_max3_f32 %s, %s, %s, %s" % (vP, vP, vr(S1), vM))
        A("v_sub_f32 %s, %s, %s" % (vr(S1), vM, vP))
        A("v_mul_f32 %s, %s, %s" % (vr(S1), f32(LOG2E), vr(S1)))
        A("v_exp_f32 %s, %s" % (vr(S1), vr(S1)))
        A("v_mov_b32 %s, %s" % (vM, vP))
        for i in range(4):
            A("v_mul_f32 %s, %s, %s" % (vr(ACCL + i), vr(ACCL + i), vr(S1)))
            A("v_mul_f32 %s, %s, %s" % (vr(ACCH + i), vr(ACCH + i), vr(S1)))
        A("v_mul_f32 %s, %s, %s" % (vL, vL, vr(S1)))
        A("s_branch L_back_%s" % tag)

    A.label("L_service")
    nstamp[0] = 1 if stamps else 0
    vL16, vL8, vX2, vX3, vXG, vDB, vRD = "v4", "v5", "v6", "v7", "v8", "v9", "v10"
    t0, t1, t2, t3 = "v12", "v13", "v14", "v15"
    R = 16
    XA, XB = "v24", "v25"
    E = 32
    sTAG = "s40"
    nlab = [0]

    def spin_check(fail):
        A("s_sub_u32 %s, %s, 1" % (sSPIN, sSPIN))
        A("s_cmp_eq_u32 %s, 0" % sSPIN)
        A("s_cbranch_scc1 %s" % fail)

    def any_sentinel(regs):
        A("v_max3_u32 %s, %s, %s, %s" % (t0, regs[0], regs[1], regs[2]))
        k = 3
        while k + 1 < len(regs):
            A("v_max3_u32 %s, %s, %s, %s" % (t0, t0, regs[k], regs[k + 1]))
            k += 2
        if k < len(regs):
            A("v_max_u32 %s, %s, %s" % (t0, t0, regs[k]))
        A("v_cmp_eq_u32 vcc, -1, %s" % t0)

    def sum8_lds(off):
        for w in range(W):
            A("ds_read_b128 %s, %s offset:%d" % (vr(E + 4 * w, 4), vL16, L_P1 + 1536 * w + off))
        A("s_waitcnt lgkmcnt(%d)" % (W - 2))
        for i in range(4):
            A("v_add_f32 %s, %s, %s" % (vr(R + i), vr(E + i), vr(E + 4 + i)))
        for w in range(2, W):
            A("s_waitcnt lgkmcnt(%d)" % (W - 1 - w))
            for i in range(4):
                A("v_add_f32 %s, %s, %s" % (vr(R + i), vr(R + i), vr(E + 4 * w + i)))

    def combine8():
        m = [vr(E + 4 * k + 2) for k in range(8)]
        M = vr(R + 2)
        A("v_max3_f32 %s, %s, %s, %s" % (M, m[0], m[1], m[2]))
        A("v_max3_f32 %s, %s, %s, %s" % (t0, m[3], m[4], m[5]))
        A("v_max3_f32 %s, %s, %s, %s" % (M, M, m[6], m[7]))
        A("v_max_f32 %s, %s, %s" % (M, M, t0))
        for k in range(8):
            A("v_sub_f32 %s, %s, %s" % (m[k], m[k], M))
        for k in range(8):
            A("v_mul_f32 %s, %s, %s" % (m[k], f32(LOG2E), m[k]))
        for k in range(8):
            A("v_exp_f32 %s, %s" % (m[k], m[k]))
        for j in (0, 1, 3):
            A("v_mul_f32 %s, %s, %s" % (vr(R + j), m[0], vr(E + j)))
        for k in range(1, 8):
            for j in (0, 1, 3):
                A("v_fmac_f32 %s, %s, %s" % (vr(R + j), m[k], vr(E + 4 * k + j)))

    def canon(n=4):
        for i in range(n):
            A("v_min_u32 %s, -2, %s" % (vr(R + i), vr(R + i)))

    A("s_setprio 3")
    A("v_lshlrev_b32 %s, 4, %s" % (vL16, vLANE))
    A("v_lshlrev_b32 %s, 3, %s" % (vL8, vLANE))
    A("s_mov_b32 %s, %d" % (sSPIN, spin))
    A("s_lshl_b32 %s, s2, 10" % sT0)
    A("v_add_u32 %s, %s, %s" % (vX2, sT0, vL16))
    A("s_lshl_b32 %s, %s, 12" % (sT0, sH))
    A("s_lshl_b32 %s, %s, 9" % (sT1, sS))
    A("s_add_u32 %s, %s, %s" % (sT0, sT0, sT1))
    A("s_add_u32 %s, %s, 0x%x" % (sT0, sT0, X3A))
    A("v_and_b32 %s, 31, %s" % (t0, vLANE))
    A("v_lshlrev_b32 %s, 4, %s" % (t0, t0))
    A("v_lshrrev_b32 %s, 5, %s" % (t1, vLANE))
    A("v_lshl_add_u32 %s, %s, 17, %s" % (vX3, t1, t0))
    A("v_add_u32 %s, %s, %s" % (vX3, sT0, vX3))
    for i in range(4):
        A("v_mov_b32 %s, -1" % vr(R + i))
    A("s_cmp_lt_u32 %s, 28" % sH)
    A("s_cselect_b32 %s, 64, 32" % sT1)
    A("v_cmp_gt_u32 vcc, %s, %s" % (sT1, vLANE))
    A("v_cndmask_b32 %s, 0, -1, vcc" % vr(R + 4))
    A("v_mov_b32 %s, %s" % (vr(R + 5), vr(R + 4)))
    A("v_mov_b32 %s, %s" % (vr(R + 6), vr(R + 4)))
    A("v_mov_b32 %s, %s" % (vr(R + 7), vr(R + 4)))
    A("v_add_u32 %s, 0x%x, %s" % (t2, X1B, vX2))
    A("v_add_u32 %s, 0x%x, %s" % (vX2, X2, vX2))
    A("v_add_u32 %s, 0x%x, %s" % (t3, X1 - X2, vX2))
    A("s_waitcnt lgkmcnt(0)")
    A("s_load_dword %s, %s, 0x%x" % (sTAG, sWS, EPOCH))
    A("global_store_dwordx4 %s, %s, %s sc1" % (vX2, vr(R, 4), sWS))
    A("global_store_dwordx4 %s, %s, %s sc1" % (t2, vr(R, 4), sWS))
    A("global_store_dwordx4 %s, %s, %s sc1" % (vX3, vr(R + 4, 4), sWS))
    A("s_lshl_b32 %s, %s, 8" % (sT0, sH))
    A("s_add_u32 %s, %s, 0x%x" % (sT0, sT0, CNT))
    A("v_mov_b32 %s, %s" % (t0, sT0))
    A("v_mov_b32 %s, 0" % t1)
    A("s_mov_b64 exec, 1")
    A("global_store_dword %s, %s, %s sc1" % (t0, t1, sWS))
    A("s_mov_b64 exec, -1")
    A("s_lshl_b32 %s, %s, 13" % (sT0, sH))
    A("s_add_u32 %s, %s, 0x%x" % (sT0, sT0, X1 + 4096))
    A("v_add_u32 %s, %s, %s" % (vXG, sT0, vL16))
    A("v_mov_b32 %s, 0" % vRD)
    A("v_lshlrev_b32 %s, 2, %s" % (t1, vLANE))
    A("s_waitcnt lgkmcnt(0)")
    A("s_mul_i32 %s, %s, 0x9e3779b1" % (sTAG, sTAG))
    A("s_add_u32 %s, %s, 0x7f4a7c15" % (sTAG, sTAG))
    A("v_mov_b32 %s, %s" % (vr(R + 1), sTAG))
    A("v_mov_b32 %s, %s" % (vr(R + 3), sTAG))
    A("s_waitcnt vmcnt(0)")
    A("s_barrier")
    stamp()
    for w in range(W):
        A("ds_read_b64 %s, %s offset:%d" % (vr(E + 2 * w, 2), vL8, L_P1 + 1536 * w))
    A("s_waitcnt lgkmcnt(%d)" % (W - 2))
    A("v_add_f32 %s, %s, %s" % (vr(R), vr(E), vr(E + 2)))
    A("v_add_f32 %s, %s, %s" % (vr(R + 2), vr(E + 1), vr(E + 3)))
    for w in range(2, W):
        A("s_waitcnt lgkmcnt(%d)" % (W - 1 - w))
        A("v_add_f32 %s, %s, %s" % (vr(R), vr(R), vr(E + 2 * w)))
        A("v_add_f32 %s, %s, %s" % (vr(R + 2), vr(R + 2), vr(E + 2 * w + 1)))
    A("global_store_dwordx4 %s, %s, %s sc1" % (t3, vr(R, 4), sWS))
    stamp()
    A.label("L_poll1")
    for k in range(8):
        A("global_load_dwordx4 %s, %s, %s offset:%d sc1" % (vr(E + 4 * k, 4), vXG, sWS, 1024 * k - 4096))
    spin_check("L_svc_end")
    A("s_waitcnt vmcnt(0)")
    tg = [vr(E + 2 * i + 1) for i in range(16)]
    A("v_max3_u32 %s, %s, %s, %s" % (t0, tg[0], tg[1], sTAG))
    A("v_min3_u32 %s, %s, %s, %s" % (t3, tg[0], tg[1], sTAG))
    for i in range(2, 16, 2):
        A("v_max3_u32 %s, %s, %s, %s" % (t0, t0, tg[i], tg[i + 1]))
        A("v_min3_u32 %s, %s, %s, %s" % (t3, t3, tg[i], tg[i + 1]))
    A("v_cmp_ne_u32 vcc, %s, %s" % (t0, t3))
    A("s_cbranch_vccnz L_poll1")
    stamp()
    A("v_add_f32 %s, %s, %s" % (vr(R), vr(E), vr(E + 4)))
    A("v_add_f32 %s, %s, %s" % (vr(R + 1), vr(E + 2), vr(E + 6)))
    for k in range(2, 8):
        A("v_add_f32 %s, %s, %s" % (vr(R), vr(R), vr(E + 4 * k)))
        A("v_add_f32 %s, %s, %s" % (vr(R + 1), vr(R + 1), vr(E + 4 * k + 2)))
    A("v_cvt_pk_bf16_f32 %s, %s, %s" % (t0, vr(R), vr(R + 1)))
    A("ds_write_b32 %s, %s offset:%d" % (t1, t0, L_Q))
    A("s_waitcnt lgkmcnt(0)")
    A("s_barrier")
    stamp()
    A("v_mov_b32 %s, 0" % vDB)
    A("v_mov_b32 %s, 1" % t1)
    A("s_mov_b64 exec, 1")
    A("global_atomic_add %s, %s, %s" % (vDB, t1, sDBG))
    A("s_mov_b64 exec, -1")
    A("s_cmp_ge_u32 %s, 28" % sH)
    A("s_cbranch_scc1 L_noffn")
    sum8_lds(512)
    canon()
    A("global_store_dwordx4 %s, %s, %s sc1" % (t2, vr(R, 4), sWS))
    A("s_lshl_b32 %s, %s, 13" % (sT0, sH))
    A("s_add_u32 %s, %s, 0x%x" % (sT0, sT0, X1B + 4096))
    A("v_add_u32 %s, %s, %s" % (vXG, sT0, vL8))
    A.label("L_poll1b")
    for k in range(8):
        A("global_load_dwordx2 %s, %s, %s offset:%d sc1" % (vr(E + 4 * k, 2), vXG, sWS, 1024 * k - 4096))
        A("global_load_dwordx2 %s, %s, %s offset:%d sc1" % (vr(E + 4 * k + 2, 2), vXG, sWS, 1024 * k - 4096 + 512))
    spin_check("L_svc_end")
    A("s_waitcnt vmcnt(0)")
    any_sentinel([vr(E + i) for i in range(32)])
    A("s_cbranch_vccz L_got1b")
    A("s_sleep 8")
    A("s_branch L_poll1b")
    A.label("L_got1b")
    for i in range(4):
        A("v_add_f32 %s, %s, %s" % (vr(R + i), vr(E + i), vr(E + 4 + i)))
    for k in range(2, 8):
        for i in range(4):
            A("v_add_f32 %s, %s, %s" % (vr(R + i), vr(R + i), vr(E + 4 * k + i)))
    for i in range(4):
        round_bf16(vr(R + i))
    C1 = -2.0 * LOG2E * 0.7978845608028654
    for i, t in ((0, t0), (1, t1)):
        x = vr(R + i)
        A("v_mul_f32 %s, %s, %s" % (t, x, x))
        A("v_mul_f32 %s, %s, %s" % (t, f32(0.044715), t))
        A("v_fma_f32 %s, %s, %s, %s" % (t, t, x, x))
        A("v_mul_f32 %s, %s, %s" % (t, f32(C1), t))
        A("v_exp_f32 %s, %s" % (t, t))
        A("v_add_f32 %s, 1.0, %s" % (t, t))
        A("v_rcp_f32 %s, %s" % (t, t))
        A("v_mul_f32 %s, %s, %s" % (t, t, x))
        round_bf16(t)
        A("v_mul_f32 %s, %s, %s" % (t, t, vr(R + 2 + i)))
        A("v_cvt_pk_bf16_f32 %s, %s, %s" % (t, t, t))
    A("ds_write_b64 %s, v[12:13] offset:%d" % (vL8, L_H))
    A.label("L_noffn")
    stamp()
    A("s_cmp_ge_u32 %s, 4" % sH)
    A("s_cbranch_scc1 L_nored1")
    A.label("L_pollc")
    A("global_load_dword %s, %s, %s sc1" % (t0, vDB, sDBG))
    spin_check("L_svc_end")
    A("s_waitcnt vmcnt(0)")
    A("v_cmp_gt_u32 vcc, 0x100, %s" % t0)
    A("s_cbranch_vccz L_gotc")
    A("s_sleep 32")
    A("s_branch L_pollc")
    A.label("L_gotc")
    A("s_lshl_b32 %s, %s, 7" % (sT0, sS))
    A("s_lshl_b32 %s, %s, 5" % (sT1, sH))
    A("s_add_u32 %s, %s, %s" % (sT0, sT0, sT1))
    A("v_and_b32 %s, 7, %s" % (t0, vLANE))
    A("v_lshrrev_b32 %s, 3, %s" % (t1, vLANE))
    A("v_lshlrev_b32 %s, 12, %s" % (vRD, t1))
    A("v_lshl_add_u32 %s, %s, 4, %s" % (vRD, t0, vRD))
    A("s_lshl_b32 %s, %s, 2" % (sT1, sT0))
    A("s_add_u32 %s, %s, 0x%x" % (sT1, sT1, X3A))
    A("v_add_u32 %s, %s, %s" % (vRD, sT1, vRD))
    A("v_and_b32 %s, 1, %s" % (t1, vG))
    A("v_lshl_add_u32 %s, %s, 2, %s" % (t0, t0, t1))
    A("v_add_u32 %s, %s, %s" % (t0, sT0, t0))
    A("v_lshlrev_b32 %s, 1, %s" % (vDB, t0))
    A("global_load_ushort %s, %s, %s" % (XA, vDB, sX))
    A("global_load_ushort %s, %s, %s offset:4" % (XB, vDB, sX))
    A.label("L_nored1")
    A("s_lshl_b32 %s, %s, 13" % (sT0, sH))
    A("s_add_u32 %s, %s, 0x%x" % (sT0, sT0, X2 + 4096))
    A("v_add_u32 %s, %s, %s" % (vXG, sT0, vL16))
    A("s_waitcnt vmcnt(0) lgkmcnt(0)")
    stamp()
    A("s_barrier")
    stamp()
    for w in range(W):
        A("ds_read_b128 %s, %s offset:%d" % (vr(E + 4 * w, 4), vL16, L_P3 + 1024 * w))
    A("s_waitcnt lgkmcnt(0)")
    combine8()
    canon()
    A("global_store_dwordx4 %s, %s, %s sc1" % (vX2, vr(R, 4), sWS))
    stamp()
    A.label("L_poll2")
    for k in range(8):
        A("global_load_dwordx4 %s, %s, %s offset:%d sc1" % (vr(E + 4 * k, 4), vXG, sWS, 1024 * k - 4096))
    spin_check("L_svc_end")
    A("s_waitcnt vmcnt(0)")
    any_sentinel([vr(E + i) for i in range(32)])
    A("s_cbranch_vccz L_got2")
    A("s_sleep 2")
    A("s_branch L_poll2")
    A.label("L_got2")
    stamp()
    combine8()
    A("v_rcp_f32 %s, %s" % (t0, vr(R + 3)))
    A("v_mul_f32 %s, %s, %s" % (t2, vr(R), t0))
    A("v_mul_f32 %s, %s, %s" % (t3, vr(R + 1), t0))
    A("v_cvt_pk_bf16_f32 %s, %s, %s" % (t2, t2, t2))
    A("v_cvt_pk_bf16_f32 %s, %s, %s" % (t3, t3, t3))
    A("ds_write_b64 %s, v[14:15] offset:%d" % (vL8, L_O))
    A("s_waitcnt lgkmcnt(0)")
    A("s_barrier")
    A("s_cmp_lt_u32 %s, 28" % sH)
    A("s_cselect_b32 %s, -1, 0" % sT1)
    A("s_barrier")
    sum8_lds(0)
    canon()
    A("s_mov_b32 exec_hi, %s" % sT1)
    A("global_store_dwordx4 %s, %s, %s sc1" % (vX3, vr(R, 4), sWS))
    A("s_mov_b64 exec, -1")
    stamp()
    A("s_cmp_ge_u32 %s, 4" % sH)
    A("s_cbranch_scc1 L_svc_end")
    A("v_add_u32 %s, 0x8000, %s" % (t1, vRD))
    A("v_add_u32 %s, 0x10000, %s" % (t2, vRD))
    A("v_add_u32 %s, 0x18000, %s" % (t3, vRD))
    A("v_add_u32 %s, 0x20000, %s" % (vr(R), vRD))
    A("v_add_u32 %s, 0x20000, %s" % (vr(R + 1), t1))
    A("v_add_u32 %s, 0x20000, %s" % (vr(R + 2), t2))
    A("v_add_u32 %s, 0x20000, %s" % (vr(R + 3), t3))
    A.label("L_poll3")
    for k, a in enumerate((vRD, t1, t2, t3, vr(R), vr(R + 1), vr(R + 2), vr(R + 3))):
        A("global_load_dwordx4 %s, %s, %s sc1" % (vr(E + 4 * k, 4), a, sWS))
    spin_check("L_svc_end")
    A("s_waitcnt vmcnt(0)")
    any_sentinel([vr(E + i) for i in range(32)])
    A("s_cbranch_vccz L_got3")
    A("s_sleep 2")
    A("s_branch L_poll3")
    A.label("L_got3")
    stamp()
    for half in (0, 16):
        for i in range(4):
            A("v_add_f32 %s, %s, %s" % (vr(E + half + i), vr(E + half + i), vr(E + half + 4 + i)))
            A("v_add_f32 %s, %s, %s" % (vr(E + half + 8 + i), vr(E + half + 8 + i), vr(E + half + 12 + i)))
        for i in range(4):
            A("v_add_f32 %s, %s, %s" % (vr(E + half + i), vr(E + half + i), vr(E + half + 8 + i)))
    for i in range(4):
        A("v_permlane32_swap_b32 %s, %s" % (vr(E + i), vr(E + 16 + i)))
    for i in range(4):
        A("v_add_f32 %s, %s, %s" % (vr(E + i), vr(E + i), vr(E + 16 + i)))
    A("v_permlane16_swap_b32 %s, %s" % (vr(E), vr(E + 1)))
    A("v_permlane16_swap_b32 %s, %s" % (vr(E + 2), vr(E + 3)))
    A("v_add_f32 %s, %s, %s" % (t0, vr(E), vr(E + 1)))
    A("v_add_f32 %s, %s, %s" % (t1, vr(E + 2), vr(E + 3)))
    A("v_add_f32_dpp %s, %s, %s row_ror:8 %s" % (t0, t0, t0, FULL))
    A("v_add_f32_dpp %s, %s, %s row_ror:8 %s" % (t1, t1, t1, FULL))
    round_bf16(t0)
    round_bf16(t1)
    A("v_permlane32_swap_b32 %s, %s" % (t0, t2))
    A("v_permlane32_swap_b32 %s, %s" % (t1, t3))
    A("v_lshlrev_b32 %s, 16, %s" % (XA, XA))
    A("v_lshlrev_b32 %s, 16, %s" % (XB, XB))
    A("v_add_f32 %s, %s, %s" % (t0, t0, XA))
    A("v_add_f32 %s, %s, %s" % (t1, t1, XB))
    round_bf16(t0)
    round_bf16(t1)
    A("v_add_f32 %s, %s, %s" % (t0, t0, t2))
    A("v_add_f32 %s, %s, %s" % (t1, t1, t3))
    A("v_cvt_pk_bf16_f32 %s, %s, %s" % (t0, t0, t0))
    A("v_cvt_pk_bf16_f32 %s, %s, %s" % (t1, t1, t1))
    A("s_mov_b64 exec, 0x00ff00ff")
    A("global_store_short %s, %s, %s" % (vDB, t0, sOUT))
    A("global_store_short %s, %s, %s offset:4" % (vDB, t1, sOUT))
    A("s_cmp_lg_u32 s2, 0")
    A("s_cbranch_scc1 L_noepoch")
    A("s_mov_b64 exec, 1")
    A("v_mov_b32 %s, 0x%x" % (t2, EPOCH))
    A("v_mov_b32 %s, %s" % (t3, sTAG))
    A("global_store_dword %s, %s, %s sc1" % (t2, t3, sWS))
    A.label("L_noepoch")
    stamp()
    A.label("L_svc_end")
    dump_stamps(14)
    A.label("L_end")
    A("s_endpgm")

    errs = A.verify_edges()
    if errs:
        raise RuntimeError("\n".join(errs))
    mv, ms = A.max_regs()
    nv = mv + 1
    acc = (nv + 3) // 4 * 4
    out = HEADER
    out += "; @launch grid=(256,1,1) block=(%d,1,1) lds=%d\n" % (64 * (W + 1), LDS_BYTES)
    out += ".amdgcn_target \"amdgcn-amd-amdhsa--gfx950\"\n.text\n"
    out += ".globl %s_kernel\n.p2align 8\n.type %s_kernel,@function\n%s_kernel:\n" % (NAME, NAME, NAME)
    out += A.text()
    out += """.section .rodata,"a"
.p2align 6
.amdhsa_kernel %s_kernel
  .amdhsa_next_free_vgpr %d
  .amdhsa_next_free_sgpr %d
  .amdhsa_accum_offset %d
  .amdhsa_group_segment_fixed_size 0
  .amdhsa_kernarg_size 96
  .amdhsa_user_sgpr_count 2
  .amdhsa_user_sgpr_kernarg_segment_ptr 1
  .amdhsa_system_sgpr_workgroup_id_x 1
  .amdhsa_float_denorm_mode_32 3
  .amdhsa_float_denorm_mode_16_64 3
.end_amdhsa_kernel
""" % (NAME, nv, ms + 1, acc)
    return out


if __name__ == "__main__":
    ap = argparse.ArgumentParser()
    ap.add_argument("-o", default="cdna_kernels/%s.s" % NAME)
    ap.add_argument("--ns", type=int, default=2)
    ap.add_argument("--stamps", action="store_true")
    ap.add_argument("--cap", type=int, default=8)
    ap.add_argument("--static", action="store_true")
    ap.add_argument("--rot", type=int, default=871)
    a = ap.parse_args()
    txt = gen(NS=a.ns, C=a.cap, stamps=a.stamps, dyn=not a.static, rot=a.rot)
    open(a.o, "w").write(txt)
    print("wrote", a.o, len(txt), "bytes")
```

```python
import sys, struct, argparse
from asmlib import Asm

NAME = "parallel_sum__mha_block_cached__geglu_ffn__decode"

HEADER = """; Kernarg layout for this problem (96 bytes, ptrs only, base s[0:1]):
"""


def f32(x):
    return "0x%08x" % struct.unpack("<I", struct.pack("<f", x))[0]


LOG2E = 1.4426950408889634
SCALE = 128 ** -0.5
FULL = "row_mask:0xf bank_mask:0xf"

X1 = 0x200000
EPOCH = 0x38000
X1B = 0x40000
X2 = 0x80000
X3A = 0xC0000
X3B = 0xE0000
CNT = 0x30000
TS = 0x100000

L_P1 = 0
L_Q = 12288
L_H = 12544
L_O = 13056
L_P3 = 13568
LDS_BYTES = 13568 + 8192


def vr(a, n=1):
    return "v%d" % a if n == 1 else "v[%d:%d]" % (a, a + n - 1)


def gen(W=8, NS=2, C=8, stamps=False, spin=1 << 20, dyn=True, rot=871, wpol=" nt"):
    assert W == 8
    A = Asm()
    NIT = 4096 // (16 * W)
    STEP = W * 4096
    sX, sK, sV, sWQ, sWO, sWG, sWU, sWD, sOUT, sDBG, sWS = (
        "s[4:5]", "s[6:7]", "s[8:9]", "s[10:11]", "s[12:13]", "s[16:17]", "s[18:19]",
        "s[20:21]", "s[22:23]", "s[24:25]", "s[26:27]")
    sWAVE, sH, sS, sT0, sT1, sT2, sT3, sCNT, sSPIN = "s28", "s29", "s30", "s31", "s32", "s33", "s34", "s35", "s36"
    nstamp = [0]

    def stamp():
        if stamps:
            k = nstamp[0]
            A("s_memrealtime s[%d:%d]" % (64 + 2 * k, 65 + 2 * k))
            A("s_waitcnt lgkmcnt(0)")
            nstamp[0] += 1

    def dump_stamps(n):
        if not stamps:
            return
        A("s_waitcnt vmcnt(0) lgkmcnt(0)")
        A("s_mov_b64 exec, 1")
        A("s_lshl_b32 %s, s2, 4" % sT0)
        A("s_add_u32 %s, %s, %s" % (sT0, sT0, sWAVE))
        A("s_lshl_b32 %s, %s, 8" % (sT0, sT0))
        A("s_add_u32 %s, %s, 0x%x" % (sT0, sT0, TS))
        A("v_mov_b32 v1, %s" % sT0)
        for k in range(n):
            A("v_mov_b32 v2, s%d" % (64 + 2 * k))
            A("v_mov_b32 v3, s%d" % (65 + 2 * k))
            A("global_store_dwordx2 v1, v[2:3], %s offset:%d" % (sWS, 8 * k))
        A("s_getreg_b32 %s, hwreg(HW_REG_XCC_ID)" % sT1)
        A("s_getreg_b32 %s, hwreg(HW_REG_HW_ID)" % sT2)
        A("v_mov_b32 v2, %s" % sT1)
        A("v_mov_b32 v3, %s" % sT2)
        A("global_store_dwordx2 v1, v[2:3], %s offset:248" % sWS)

    def round_bf16(v):
        A("v_cvt_pk_bf16_f32 %s, %s, %s" % (v, v, v))
        A("v_lshlrev_b32 %s, 16, %s" % (v, v))

    def wave_sum(v, t, rows_uniform_from=None):
        steps = [8, 4, 2, 1] if rows_uniform_from is None else rows_uniform_from
        for r in steps:
            A("v_add_f32_dpp %s, %s, %s row_ror:%d %s" % (v, v, v, r, FULL))
        A("v_mov_b32 %s, %s" % (t, v))
        A("v_permlane16_swap_b32 %s, %s" % (v, t))
        A("v_add_f32 %s, %s, %s" % (v, v, t))
        A("v_mov_b32 %s, %s" % (t, v))
        A("v_permlane32_swap_b32 %s, %s" % (v, t))
        A("v_add_f32 %s, %s, %s" % (v, v, t))

    def make_masks(MASK, vC, t):
        A("v_and_b32 %s, 1, %s" % (t[0], vC))
        A("v_lshlrev_b32 %s, 4, %s" % (t[0], t[0]))
        A("v_mov_b32 %s, 0xffff" % t[1])
        A("v_lshlrev_b32 %s, %s, %s" % (t[1], t[0], t[1]))
        A("v_bfe_u32 %s, %s, 1, 2" % (t[0], vC))
        for r in range(4):
            A("v_cmp_eq_u32 vcc, %d, %s" % (r, t[0]))
            A("v_cndmask_b32 %s, 0, %s, vcc" % (vr(MASK + r), t[1]))

    A("s_cmp_ge_u32 s2, 256")
    A("s_cbranch_scc1 L_end")
    A("s_load_dwordx16 s[4:19], s[0:1], 0")
    A("s_load_dwordx8 s[20:27], s[0:1], 64")
    stamp_entry = None
    if stamps:
        A("s_memrealtime s[64:65]")
        nstamp[0] = 1
    A("v_lshrrev_b32 v1, 6, v0")
    A("s_lshr_b32 %s, s2, 3" % sH)
    A("v_readfirstlane_b32 %s, v1" % sWAVE)
    A("s_and_b32 %s, s2, 7" % sS)
    A("v_and_b32 v2, 15, v0")
    A("v_bfe_u32 v3, v0, 4, 2")
    A("v_and_b32 v1, 63, v0")
    A("s_cmp_eq_u32 %s, %d" % (sWAVE, W))
    A("s_cbranch_scc1 L_service")

    vLANE, vC, vG = "v1", "v2", "v3"
    vKO, vVO = "v4", "v5"
    vM, vL, vT, vP, vU0, vU1 = "v6", "v7", "v8", "v9", "v10", "v11"
    MASK = 12
    AQ = 16
    ACCL, ACCH, DQK = 32, 36, 40
    S1, S2 = 44, 48
    KB = [52 + 32 * i for i in range(NS)]
    VB = [68 + 32 * i for i in range(NS)]
    WT = 52 + 32 * NS
    XO = WT + 48
    vAT, vCA, vONE = vr(WT + 32), vr(WT + 33), vr(WT + 34)
    sWID, sFLAG, sROT = "s37", "s38", "s39"
    sCUR = ["s%d" % (48 + b) for b in range(NS)]
    sOFF = ["s%d" % (52 + b) for b in range(NS)]
    vXS, vXOo, vWQo, vWGo = vM, vL, vT, vP

    A("v_lshlrev_b32 %s, 5, %s" % (vXS, vLANE))
    A("s_lshl_b32 %s, %s, 7" % (sT0, sS))
    A("s_lshl_b32 %s, %s, 4" % (sT1, sWAVE))
    A("s_add_u32 %s, %s, %s" % (sT0, sT0, sT1))
    A("v_lshl_add_u32 %s, %s, 2, %s" % (vU0, vG, sT0))
    A("v_lshlrev_b32 %s, 1, %s" % (vXOo, vU0))
    A("s_lshl_b32 %s, %s, 8" % (sT1, sH))
    A("v_lshl_add_u32 %s, %s, 4, %s" % (vU1, vC, sT1))
    A("v_lshl_add_u32 %s, %s, 13, %s" % (vWQo, vU0, vU1))
    A("s_movk_i32 %s, 7168" % sT2)
    A("s_cmp_lt_u32 %s, 28" % sH)
    A("s_cselect_b32 %s, %s, 0" % (sT2, sT2))
    A("s_cselect_b32 %s, -1, 0" % sT3)
    A("v_mul_u32_u24 %s, %s, %s" % (vWGo, sT2, vU0))
    A("v_and_b32 %s, %s, %s" % (vU1, sT3, vU1))
    A("v_add_u32 %s, %s, %s" % (vWGo, vWGo, vU1))
    A("v_lshlrev_b32 %s, 10, %s" % (vVO, vG))
    A("v_lshl_add_u32 %s, %s, 4, %s" % (vVO, vC, vVO))
    A("v_bfe_u32 %s, v0, 2, 2" % vU0)
    A("v_and_b32 %s, 3, v0" % vU1)
    A("v_lshlrev_b32 %s, 8, %s" % (vKO, vU0))
    A("v_lshl_add_u32 %s, %s, 6, %s" % (vKO, vG, vKO))
    A("v_lshl_add_u32 %s, %s, 4, %s" % (vKO, vU1, vKO))
    A("s_lshl_b32 %s, %s, 3" % (sWID, sS))
    A("s_add_u32 %s, %s, %s" % (sWID, sWID, sWAVE))
    A("s_lshl_b32 %s, %s, 23" % (sT0, sH))
    A("s_waitcnt lgkmcnt(0)")
    A("global_load_dwordx4 %s, %s, %s" % (vr(S1, 4), vXS, sX))
    A("global_load_dwordx4 %s, %s, %s offset:16" % (vr(S2, 4), vXS, sX))
    A("global_load_dwordx2 %s, %s, %s" % (vr(XO, 2), vXOo, sX))
    for u in range(4):
        A("global_load_dwordx4 %s, %s, %s%s" % (vr(WT + 4 * u, 4), vWQo, sWQ, wpol))
        if u < 3:
            A("v_add_u32 %s, 0x2000, %s" % (vWQo, vWQo))
    A("s_add_u32 s40, s6, %s" % sT0)
    A("s_addc_u32 s41, s7, 0")
    A("s_mov_b32 s42, 0x800000")
    A("s_mov_b32 s43, 0x20000")
    A("s_add_u32 s44, s8, %s" % sT0)
    A("s_addc_u32 s45, s9, 0")
    A("s_mov_b32 s46, 0x800000")
    A("s_mov_b32 s47, 0x20000")

    def load_w(dst, sb):
        A("v_mov_b32 %s, %s" % (vr(DQK), vWGo))
        for u in range(4):
            A("global_load_dwordx4 %s, %s, %s%s" % (vr(dst + 4 * u, 4), vr(DQK), sb, wpol))
            if u < 3:
                A("v_add_u32 %s, %s, %s" % (vr(DQK), sT2, vr(DQK)))

    def load_k(b, soff):
        for t in range(4):
            A("buffer_load_dwordx4 %s, %s, s[40:43], %s offen offset:%d nt" % (vr(KB[b] + 4 * t, 4), vKO, soff, 1024 * t))

    def load_v(b, soff):
        for u in range(4):
            A("buffer_load_dwordx4 %s, %s, s[44:47], %s offen offset:%d nt" % (vr(VB[b] + 4 * u, 4), vVO, soff, 256 * u))

    make_masks(MASK, vC, [vU0, vU1])
    def chunk_off(b):
        A("s_add_u32 %s, %s, %s" % (sOFF[b], sCUR[b], sROT))
        A("s_and_b32 %s, %s, 2047" % (sOFF[b], sOFF[b]))
        A("s_lshl_b32 %s, %s, 12" % (sOFF[b], sOFF[b]))

    A("s_mul_i32 %s, %s, %d" % (sROT, sH, rot))
    for b in range(NS):
        A("s_add_u32 %s, %s, %d" % (sCUR[b], sWID, 64 * b))
        chunk_off(b)
    A("s_waitcnt vmcnt(4)")
    stamp()
    load_w(WT + 16, sWG)
    for i in range(8):
        src = vr(S1 + i)
        A("v_lshlrev_b32 %s, 16, %s" % (vr(AQ + 2 * i), src))
        A("v_and_b32 %s, 0xffff0000, %s" % (vr(AQ + 2 * i + 1), src))
    A("v_add_f32 %s, %s, %s" % (vM, vr(AQ), vr(AQ + 1)))
    A("v_add_f32 %s, %s, %s" % (vL, vr(AQ + 2), vr(AQ + 3)))
    for i in range(4, 16, 2):
        A("v_add_f32 %s, %s, %s" % (vM, vM, vr(AQ + i)))
        A("v_add_f32 %s, %s, %s" % (vL, vL, vr(AQ + i + 1)))
    A("v_add_f32 %s, %s, %s" % (vM, vM, vL))
    wave_sum(vM, vL)
    A("v_mul_f32 %s, %s, %s" % (vM, f32(1.0 / 1024), vM))
    for i in range(16):
        A("v_sub_f32 %s, %s, %s" % (vr(AQ + i), vr(AQ + i), vM))
    A("v_mul_f32 %s, %s, %s" % (vT, vr(AQ), vr(AQ)))
    A("v_mul_f32 %s, %s, %s" % (vL, vr(AQ + 1), vr(AQ + 1)))
    for i in range(2, 16, 2):
        A("v_fmac_f32 %s, %s, %s" % (vT, vr(AQ + i), vr(AQ + i)))
        A("v_fmac_f32 %s, %s, %s" % (vL, vr(AQ + i + 1), vr(AQ + i + 1)))
    A("v_add_f32 %s, %s, %s" % (vT, vT, vL))
    wave_sum(vT, vL)
    A("v_mul_f32 %s, %s, %s" % (vT, f32(1.0 / 1024), vT))
    round_bf16(vM)
    round_bf16(vT)
    A("v_add_f32 %s, %s, %s" % (vT, f32(1e-5), vT))
    round_bf16(vT)
    A("v_sqrt_f32 %s, %s" % (vT, vT))
    round_bf16(vT)
    A("v_rcp_f32 %s, %s" % (vT, vT))
    xo = [vr(S1 + i) for i in range(4)]
    A("v_lshlrev_b32 %s, 16, %s" % (xo[0], vr(XO)))
    A("v_and_b32 %s, 0xffff0000, %s" % (xo[1], vr(XO)))
    A("v_lshlrev_b32 %s, 16, %s" % (xo[2], vr(XO + 1)))
    A("v_and_b32 %s, 0xffff0000, %s" % (xo[3], vr(XO + 1)))
    for u in range(4):
        A("v_sub_f32 %s, %s, %s" % (xo[u], xo[u], vM))
    for u in range(4):
        A("v_cvt_pk_bf16_f32 %s, %s, %s" % (xo[u], xo[u], xo[u]))
    for u in range(4):
        A("v_lshlrev_b32 %s, 16, %s" % (xo[u], xo[u]))
    for u in range(4):
        A("v_mul_f32 %s, %s, %s" % (xo[u], xo[u], vT))
    for u in range(4):
        A("v_cvt_pk_bf16_f32 %s, %s, %s" % (xo[u], xo[u], xo[u]))
    for u in range(4):
        for r in range(4):
            A("v_and_b32 %s, %s, %s" % (vr(AQ + 4 * u + r), xo[u], vr(MASK + r)))
    A("v_and_b32 %s, 1, %s" % (vU0, vG))
    A("v_lshlrev_b32 %s, 4, %s" % (vU0, vU0))
    A("v_lshl_add_u32 %s, %s, 5, %s" % (vU0, vC, vU0))
    A("s_mul_i32 %s, %s, 1536" % (sT0, sWAVE))
    A("v_add_u32 %s, %s, %s" % (vU1, sT0, vU0))
    A("s_waitcnt vmcnt(4)")
    load_w(WT + 32, sWU)
    for u in range(4):
        A("v_mfma_f32_16x16x32_bf16 %s, %s, %s, %s" % (vr(DQK, 4), vr(AQ + 4 * u, 4), vr(WT + 4 * u, 4),
                                                     "0" if u == 0 else vr(DQK, 4)))
    A("ds_write_b128 %s, %s offset:%d" % (vU1, vr(DQK, 4), L_P1))
    A("s_waitcnt lgkmcnt(0)")
    stamp()
    A("s_barrier")
    A("s_waitcnt vmcnt(4)")
    load_k(0, sOFF[0])
    A("s_waitcnt vmcnt(4)")
    load_v(0, sOFF[0])
    for u in range(4):
        A("v_mfma_f32_16x16x32_bf16 %s, %s, %s, %s" % (vr(ACCL, 4), vr(AQ + 4 * u, 4), vr(WT + 16 + 4 * u, 4),
                                                     "0" if u == 0 else vr(ACCL, 4)))
        A("v_mfma_f32_16x16x32_bf16 %s, %s, %s, %s" % (vr(ACCH, 4), vr(AQ + 4 * u, 4), vr(WT + 32 + 4 * u, 4),
                                                     "0" if u == 0 else vr(ACCH, 4)))
    A("ds_write_b128 %s, %s offset:%d" % (vU1, vr(ACCL, 4), L_P1 + 512))
    A("ds_write_b128 %s, %s offset:%d" % (vU1, vr(ACCH, 4), L_P1 + 1024))
    A("s_lshl_b32 %s, %s, 7" % (sT0, sH))
    A("s_lshl_b32 %s, %s, 4" % (sT1, sWAVE))
    A("s_add_u32 %s, %s, %s" % (sT0, sT0, sT1))
    A("v_lshl_add_u32 %s, %s, 2, %s" % (vr(XO), vG, sT0))
    A("v_lshlrev_b32 %s, 11, %s" % (vr(XO), vr(XO)))
    A("s_lshl_b32 %s, %s, 8" % (sT0, sS))
    A("v_lshl_add_u32 %s, %s, 4, %s" % (vr(XO), vC, vr(XO)))
    A("v_add_u32 %s, %s, %s" % (vr(XO), sT0, vr(XO)))
    A("v_and_b32 %s, %s, %s" % (vr(XO + 1), sT3, vr(XO)))
    A("v_add_u32 %s, 0x1000, %s" % (vr(XO), vr(XO)))
    A("v_add_u32 %s, 0x1000, %s" % (vr(XO + 1), vr(XO + 1)))
    A("v_and_b32 %s, 3, %s" % (vT, vC))
    A("v_lshlrev_b32 %s, 4, %s" % (vT, vT))
    A("v_lshl_add_u32 %s, %s, 6, %s" % (vT, vG, vT))
    A("v_lshrrev_b32 %s, 2, %s" % (vP, vC))
    A("s_waitcnt lgkmcnt(0)")
    for i in range(4):
        A("v_mov_b32 %s, 0" % vr(ACCL + i))
        A("v_mov_b32 %s, 0" % vr(ACCH + i))
    A("v_mov_b32 %s, 0xff800000" % vM)
    A("v_mov_b32 %s, 0" % vL)
    A("s_sub_u32 %s, %s, 64" % (sT0, sWID))
    A("v_mov_b32 %s, %s" % (vAT, sT0))
    A("s_lshl_b32 %s, %s, 8" % (sT0, sH))
    A("s_add_u32 %s, %s, 0x%x" % (sT0, sT0, CNT))
    A("v_mov_b32 %s, %s" % (vCA, sT0))
    A("v_mov_b32 %s, 1" % vONE)
    A("s_mov_b32 %s, 0" % sFLAG)
    for b in range(1, NS):
        A("s_waitcnt vmcnt(4)")
        load_k(b, sOFF[b])
        A("s_waitcnt vmcnt(4)")
        load_v(b, sOFF[b])
    A("s_barrier")
    stamp()
    A("ds_read_b128 %s, %s offset:%d" % (vr(S1, 4), vT, L_Q))
    A("s_waitcnt lgkmcnt(0)")
    for t in range(4):
        A("v_cmp_eq_u32 vcc, %d, %s" % (t, vP))
        for r in range(4):
            A("v_cndmask_b32 %s, 0, %s, vcc" % (vr(AQ + 4 * t + r), vr(S1 + r)))

    resc = []

    def load_tile(dst, va, sb):
        for u in range(4):
            A("global_load_dwordx4 %s, %s, %s offset:%d%s" % (vr(dst + 4 * u, 4), va, sb, 2048 * (u - 2), wpol))

    assert NS == 2
    tails = []

    def body(b):
        tag = "m%d" % b
        A("s_cmp_ge_u32 %s, 2048" % sCUR[b])
        A("s_cbranch_scc1 L_exit")
        A("s_waitcnt vmcnt(12)")
        for t in range(4):
            A("v_mfma_f32_16x16x32_bf16 %s, %s, %s, %s" % (vr(DQK, 4), vr(AQ + 4 * t, 4), vr(KB[b] + 4 * t, 4),
                                                         "0" if t == 0 else vr(DQK, 4)))
        A("s_movk_i32 %s, 2048" % sCUR[b])
        A("s_cmp_lg_u32 %s, 0" % sFLAG)
        A("s_cbranch_scc1 L_skipk_%s" % tag)
        A("s_waitcnt vmcnt(%d)" % (C - 4))
        A("v_readfirstlane_b32 %s, %s" % (sCUR[b], vAT))
        A("s_add_u32 %s, %s, %d" % (sCUR[b], sCUR[b], 64 * (NS + 1)))
        A("s_cmp_ge_u32 %s, 2048" % sCUR[b])
        A("s_cbranch_scc1 L_tail_%s" % tag)
        tails.append(tag)
        chunk_off(b)
        if dyn:
            A("s_mov_b64 exec, 1")
            A("global_atomic_add %s, %s, %s, %s sc0" % (vAT, vCA, vONE, sWS))
            A("s_mov_b64 exec, -1")
        else:
            A("v_add_u32 %s, 64, %s" % (vAT, vAT))
        load_k(b, sOFF[b])
        A.label("L_skipk_%s" % tag)
        A("s_nop 4")
        A("v_mov_b32_dpp %s, %s quad_perm:[0,0,0,0] %s" % (vT, vr(DQK), FULL))
        A("v_mov_b32_dpp %s, %s quad_perm:[2,2,2,2] %s" % (vP, vr(DQK + 2), FULL))
        A("v_add_f32_dpp %s, %s, %s quad_perm:[1,1,1,1] %s" % (vT, vr(DQK + 1), vT, FULL))
        A("v_add_f32_dpp %s, %s, %s quad_perm:[3,3,3,3] %s" % (vP, vr(DQK + 3), vP, FULL))
        A("v_add_f32 %s, %s, %s" % (vT, vT, vP))
        round_bf16(vT)
        A("v_mul_f32 %s, %s, %s" % (vT, f32(SCALE), vT))
        round_bf16(vT)
        A("v_cmp_gt_f32 vcc, %s, %s" % (vT, vM))
        A("s_cbranch_vccnz L_resc_%s" % tag)
        A.label("L_back_%s" % tag)
        resc.append(tag)
        A("v_sub_f32 %s, %s, %s" % (vP, vT, vM))
        A("v_mul_f32 %s, %s, %s" % (vP, f32(LOG2E), vP))
        A("v_exp_f32 %s, %s" % (vP, vP))
        A("v_add_f32 %s, %s, %s" % (vL, vL, vP))
        A("v_cvt_pk_bf16_f32 %s, %s, %s" % (vP, vP, vP))
        A("v_and_b32 %s, %s, %s" % (vr(S1), vP, vr(MASK)))
        A("v_and_b32 %s, %s, %s" % (vr(S1 + 1), vP, vr(MASK + 1)))
        A("v_and_b32_dpp %s, %s, %s row_ror:4 %s" % (vr(S1 + 2), vP, vr(MASK + 2), FULL))
        A("v_and_b32_dpp %s, %s, %s row_ror:4 %s" % (vr(S1 + 3), vP, vr(MASK + 3), FULL))
        A("v_and_b32_dpp %s, %s, %s row_ror:12 %s" % (vr(S2), vP, vr(MASK), FULL))
        A("v_and_b32_dpp %s, %s, %s row_ror:12 %s" % (vr(S2 + 1), vP, vr(MASK + 1), FULL))
        A("v_and_b32 %s, %s, %s" % (vr(S2 + 2), vP, vr(MASK + 2)))
        A("v_and_b32 %s, %s, %s" % (vr(S2 + 3), vP, vr(MASK + 3)))
        A("s_waitcnt vmcnt(8)")
        A("v_mfma_f32_16x16x32_bf16 %s, %s, %s, %s" % (vr(ACCL, 4), vr(S1, 4), vr(VB[b], 4), vr(ACCL, 4)))
        A("v_mfma_f32_16x16x32_bf16 %s, %s, %s, %s" % (vr(ACCH, 4), vr(S1, 4), vr(VB[b] + 8, 4), vr(ACCH, 4)))
        A("v_mfma_f32_16x16x32_bf16 %s, %s, %s, %s" % (vr(ACCL, 4), vr(S2, 4), vr(VB[b] + 4, 4), vr(ACCL, 4)))
        A("v_mfma_f32_16x16x32_bf16 %s, %s, %s, %s" % (vr(ACCH, 4), vr(S2, 4), vr(VB[b] + 12, 4), vr(ACCH, 4)))
        A("s_cmp_lg_u32 %s, 0" % sFLAG)
        A("s_cbranch_scc1 L_skipv_%s" % tag)
        A("s_waitcnt vmcnt(%d)" % (C - 4))
        load_v(b, sOFF[b])
        A.label("L_skipv_%s" % tag)

    A.label("L_loop")
    for b in range(NS):
        body(b)
    A("s_branch L_loop")
    for tag in tails:
        A.label("L_tail_%s" % tag)
        load_tile(WT, vr(XO), sWO)
        load_tile(WT + 16, vr(XO + 1), sWD)
        A("s_mov_b32 %s, 1" % sFLAG)
        A("s_branch L_skipk_%s" % tag)
    A.label("L_exit")
    A("s_nop 7")
    stamp()
    wave_sum(vL, vT, [4, 8])
    for i in range(4):
        A("v_permlane32_swap_b32 %s, %s" % (vr(ACCH + i), vr(S1 + i)))
    for i in range(4):
        A("v_add_f32 %s, %s, %s" % (vr(ACCL + i), vr(ACCL + i), vr(S1 + i)))
    A("s_lshl_b32 %s, %s, 10" % (sT0, sWAVE))
    A("v_lshl_add_u32 %s, %s, 1, %s" % (vT, vU0, sT0))
    A("v_lshl_add_u32 %s, %s, 4, %s" % (vP, vLANE, sT0))
    A("ds_write_b64 %s, %s offset:%d" % (vP, "v[6:7]", L_P3 + 8))
    A("s_mov_b32 exec_hi, 0")
    A("ds_write_b64 %s, %s offset:%d" % (vT, vr(ACCL, 2), L_P3))
    A("ds_write_b64 %s, %s offset:%d" % (vT, vr(ACCL + 2, 2), L_P3 + 16))
    A("s_mov_b64 exec, -1")
    A("s_lshl_b32 %s, %s, 6" % (sT0, sWAVE))
    A("v_lshl_add_u32 %s, %s, 4, %s" % (vT, vG, sT0))
    A("s_waitcnt lgkmcnt(0)")
    A("s_barrier")
    for (src_off, tile, dst_off, wait) in ((L_H, WT + 16, L_P1 + 512, 0), (L_O, WT, L_P1, None)):
        A("ds_read_b128 %s, %s offset:%d" % (vr(S1, 4), vT, src_off))
        A("s_waitcnt lgkmcnt(0)")
        for u in range(4):
            for r in range(4):
                A("v_and_b32 %s, %s, %s" % (vr(AQ + 4 * u + r), vr(S1 + u), vr(MASK + r)))
        if wait is not None:
            A("s_waitcnt vmcnt(%d)" % wait)
        for u in range(4):
            A("v_mfma_f32_16x16x32_bf16 %s, %s, %s, %s" % (vr(DQK, 4), vr(AQ + 4 * u, 4), vr(tile + 4 * u, 4),
                                                         "0" if u == 0 else vr(DQK, 4)))
        A("ds_write_b128 %s, %s offset:%d" % (vU1, vr(DQK, 4), dst_off))
        A("s_waitcnt lgkmcnt(0)")
        A("s_barrier")
    dump_stamps(nstamp[0])
    A("s_endpgm")
    for tag in resc:
        A.label("L_resc_%s" % tag)
        A("s_nop 7")
        A("v_max_f32_dpp %s, %s, %s row_ror:4 %s" % (vP, vT, vT, FULL))
        A("v_max_f32_dpp %s, %s, %s row_ror:8 %s" % (vP, vP, vP, FULL))
        A("v_mov_b32 %s, %s" % (vr(S1), vP))
        A("v_permlane16_swap_b32 %s, %s" % (vP, vr(S1)))
        A("v_max_f32 %s, %s, %s" % (vP, vP, vr(S1)))
        A("v_mov_b32 %s, %s" % (vr(S1), vP))
        A("v_permlane32_swap_b32 %s, %s" % (vP, vr(S1)))
        A("v_max3_f32 %s, %s, %s, %s" % (vP, vP, vr(S1), vM))
        A("v_sub_f32 %s, %s, %s" % (vr(S1), vM, vP))
        A("v_mul_f32 %s, %s, %s" % (vr(S1), f32(LOG2E), vr(S1)))
        A("v_exp_f32 %s, %s" % (vr(S1), vr(S1)))
        A("v_mov_b32 %s, %s" % (vM, vP))
        for i in range(4):
            A("v_mul_f32 %s, %s, %s" % (vr(ACCL + i), vr(ACCL + i), vr(S1)))
            A("v_mul_f32 %s, %s, %s" % (vr(ACCH + i), vr(ACCH + i), vr(S1)))
        A("v_mul_f32 %s, %s, %s" % (vL, vL, vr(S1)))
        A("s_branch L_back_%s" % tag)

    A.label("L_service")
    nstamp[0] = 1 if stamps else 0
    vL16, vL8, vX2, vX3, vXG, vDB, vRD = "v4", "v5", "v6", "v7", "v8", "v9", "v10"
    t0, t1, t2, t3 = "v12", "v13", "v14", "v15"
    R = 16
    XA, XB = "v24", "v25"
    E = 32
    sTAG = "s40"
    nlab = [0]

    def spin_check(fail):
        A("s_sub_u32 %s, %s, 1" % (sSPIN, sSPIN))
        A("s_cmp_eq_u32 %s, 0" % sSPIN)
        A("s_cbranch_scc1 %s" % fail)

    def any_sentinel(regs):
        A("v_max3_u32 %s, %s, %s, %s" % (t0, regs[0], regs[1], regs[2]))
        k = 3
        while k + 1 < len(regs):
            A("v_max3_u32 %s, %s, %s, %s" % (t0, t0, regs[k], regs[k + 1]))
            k += 2
        if k < len(regs):
            A("v_max_u32 %s, %s, %s" % (t0, t0, regs[k]))
        A("v_cmp_eq_u32 vcc, -1, %s" % t0)

    def sum8_lds(off):
        for w in range(W):
            A("ds_read_b128 %s, %s offset:%d" % (vr(E + 4 * w, 4), vL16, L_P1 + 1536 * w + off))
        A("s_waitcnt lgkmcnt(%d)" % (W - 2))
        for i in range(4):
            A("v_add_f32 %s, %s, %s" % (vr(R + i), vr(E + i), vr(E + 4 + i)))
        for w in range(2, W):
            A("s_waitcnt lgkmcnt(%d)" % (W - 1 - w))
            for i in range(4):
                A("v_add_f32 %s, %s, %s" % (vr(R + i), vr(R + i), vr(E + 4 * w + i)))

    def combine8():
        m = [vr(E + 4 * k + 2) for k in range(8)]
        M = vr(R + 2)
        A("v_max3_f32 %s, %s, %s, %s" % (M, m[0], m[1], m[2]))
        A("v_max3_f32 %s, %s, %s, %s" % (t0, m[3], m[4], m[5]))
        A("v_max3_f32 %s, %s, %s, %s" % (M, M, m[6], m[7]))
        A("v_max_f32 %s, %s, %s" % (M, M, t0))
        for k in range(8):
            A("v_sub_f32 %s, %s, %s" % (m[k], m[k], M))
        for k in range(8):
            A("v_mul_f32 %s, %s, %s" % (m[k], f32(LOG2E), m[k]))
        for k in range(8):
            A("v_exp_f32 %s, %s" % (m[k], m[k]))
        for j in (0, 1, 3):
            A("v_mul_f32 %s, %s, %s" % (vr(R + j), m[0], vr(E + j)))
        for k in range(1, 8):
            for j in (0, 1, 3):
                A("v_fmac_f32 %s, %s, %s" % (vr(R + j), m[k], vr(E + 4 * k + j)))

    def canon(n=4):
        for i in range(n):
            A("v_min_u32 %s, -2, %s" % (vr(R + i), vr(R + i)))

    A("s_setprio 3")
    A("v_lshlrev_b32 %s, 4, %s" % (vL16, vLANE))
    A("v_lshlrev_b32 %s, 3, %s" % (vL8, vLANE))
    A("s_mov_b32 %s, %d" % (sSPIN, spin))
    A("s_lshl_b32 %s, s2, 10" % sT0)
    A("v_add_u32 %s, %s, %s" % (vX2, sT0, vL16))
    A("s_lshl_b32 %s, %s, 12" % (sT0, sH))
    A("s_lshl_b32 %s, %s, 9" % (sT1, sS))
    A("s_add_u32 %s, %s, %s" % (sT0, sT0, sT1))
    A("s_add_u32 %s, %s, 0x%x" % (sT0, sT0, X3A))
    A("v_and_b32 %s, 31, %s" % (t0, vLANE))
    A("v_lshlrev_b32 %s, 4, %s" % (t0, t0))
    A("v_lshrrev_b32 %s, 5, %s" % (t1, vLANE))
    A("v_lshl_add_u32 %s, %s, 17, %s" % (vX3, t1, t0))
    A("v_add_u32 %s, %s, %s" % (vX3, sT0, vX3))
    for i in range(4):
        A("v_mov_b32 %s, -1" % vr(R + i))
    A("s_cmp_lt_u32 %s, 28" % sH)
    A("s_cselect_b32 %s, 64, 32" % sT1)
    A("v_cmp_gt_u32 vcc, %s, %s" % (sT1, vLANE))
    A("v_cndmask_b32 %s, 0, -1, vcc" % vr(R + 4))
    A("v_mov_b32 %s, %s" % (vr(R + 5), vr(R + 4)))
    A("v_mov_b32 %s, %s" % (vr(R + 6), vr(R + 4)))
    A("v_mov_b32 %s, %s" % (vr(R + 7), vr(R + 4)))
    A("v_add_u32 %s, 0x%x, %s" % (t2, X1B, vX2))
    A("v_add_u32 %s, 0x%x, %s" % (vX2, X2, vX2))
    A("v_add_u32 %s, 0x%x, %s" % (t3, X1 - X2, vX2))
    A("s_waitcnt lgkmcnt(0)")
    A("s_load_dword %s, %s, 0x%x" % (sTAG, sWS, EPOCH))
    A("global_store_dwordx4 %s, %s, %s sc1" % (vX2, vr(R, 4), sWS))
    A("global_store_dwordx4 %s, %s, %s sc1" % (t2, vr(R, 4), sWS))
    A("global_store_dwordx4 %s, %s, %s sc1" % (vX3, vr(R + 4, 4), sWS))
    A("s_lshl_b32 %s, %s, 8" % (sT0, sH))
    A("s_add_u32 %s, %s, 0x%x" % (sT0, sT0, CNT))
    A("v_mov_b32 %s, %s" % (t0, sT0))
    A("v_mov_b32 %s, 0" % t1)
    A("s_mov_b64 exec, 1")
    A("global_store_dword %s, %s, %s sc1" % (t0, t1, sWS))
    A("s_mov_b64 exec, -1")
    A("s_lshl_b32 %s, %s, 13" % (sT0, sH))
    A("s_add_u32 %s, %s, 0x%x" % (sT0, sT0, X1 + 4096))
    A("v_add_u32 %s, %s, %s" % (vXG, sT0, vL16))
    A("v_mov_b32 %s, 0" % vRD)
    A("v_lshlrev_b32 %s, 2, %s" % (t1, vLANE))
    A("s_waitcnt lgkmcnt(0)")
    A("s_mul_i32 %s, %s, 0x9e3779b1" % (sTAG, sTAG))
    A("s_add_u32 %s, %s, 0x7f4a7c15" % (sTAG, sTAG))
    A("v_mov_b32 %s, %s" % (vr(R + 1), sTAG))
    A("v_mov_b32 %s, %s" % (vr(R + 3), sTAG))
    A("s_waitcnt vmcnt(0)")
    A("s_barrier")
    stamp()
    for w in range(W):
        A("ds_read_b64 %s, %s offset:%d" % (vr(E + 2 * w, 2), vL8, L_P1 + 1536 * w))
    A("s_waitcnt lgkmcnt(%d)" % (W - 2))
    A("v_add_f32 %s, %s, %s" % (vr(R), vr(E), vr(E + 2)))
    A("v_add_f32 %s, %s, %s" % (vr(R + 2), vr(E + 1), vr(E + 3)))
    for w in range(2, W):
        A("s_waitcnt lgkmcnt(%d)" % (W - 1 - w))
        A("v_add_f32 %s, %s, %s" % (vr(R), vr(R), vr(E + 2 * w)))
        A("v_add_f32 %s, %s, %s" % (vr(R + 2), vr(R + 2), vr(E + 2 * w + 1)))
    A("global_store_dwordx4 %s, %s, %s sc1" % (t3, vr(R, 4), sWS))
    stamp()
    A.label("L_poll1")
    for k in range(8):
        A("global_load_dwordx4 %s, %s, %s offset:%d sc1" % (vr(E + 4 * k, 4), vXG, sWS, 1024 * k - 4096))
    spin_check("L_svc_end")
    A("s_waitcnt vmcnt(0)")
    tg = [vr(E + 2 * i + 1) for i in range(16)]
    A("v_max3_u32 %s, %s, %s, %s" % (t0, tg[0], tg[1], sTAG))
    A("v_min3_u32 %s, %s, %s, %s" % (t3, tg[0], tg[1], sTAG))
    for i in range(2, 16, 2):
        A("v_max3_u32 %s, %s, %s, %s" % (t0, t0, tg[i], tg[i + 1]))
        A("v_min3_u32 %s, %s, %s, %s" % (t3, t3, tg[i], tg[i + 1]))
    A("v_cmp_ne_u32 vcc, %s, %s" % (t0, t3))
    A("s_cbranch_vccnz L_poll1")
    stamp()
    A("v_add_f32 %s, %s, %s" % (vr(R), vr(E), vr(E + 4)))
    A("v_add_f32 %s, %s, %s" % (vr(R + 1), vr(E + 2), vr(E + 6)))
    for k in range(2, 8):
        A("v_add_f32 %s, %s, %s" % (vr(R), vr(R), vr(E + 4 * k)))
        A("v_add_f32 %s, %s, %s" % (vr(R + 1), vr(R + 1), vr(E + 4 * k + 2)))
    A("v_cvt_pk_bf16_f32 %s, %s, %s" % (t0, vr(R), vr(R + 1)))
    A("ds_write_b32 %s, %s offset:%d" % (t1, t0, L_Q))
    A("s_waitcnt lgkmcnt(0)")
    A("s_barrier")
    stamp()
    A("v_mov_b32 %s, 0" % vDB)
    A("v_mov_b32 %s, 1" % t1)
    A("s_mov_b64 exec, 1")
    A("global_atomic_add %s, %s, %s" % (vDB, t1, sDBG))
    A("s_mov_b64 exec, -1")
    A("s_cmp_ge_u32 %s, 28" % sH)
    A("s_cbranch_scc1 L_noffn")
    sum8_lds(512)
    canon()
    A("global_store_dwordx4 %s, %s, %s sc1" % (t2, vr(R, 4), sWS))
    A("s_lshl_b32 %s, %s, 13" % (sT0, sH))
    A("s_add_u32 %s, %s, 0x%x" % (sT0, sT0, X1B + 4096))
    A("v_add_u32 %s, %s, %s" % (vXG, sT0, vL8))
    A.label("L_poll1b")
    for k in range(8):
        A("global_load_dwordx2 %s, %s, %s offset:%d sc1" % (vr(E + 4 * k, 2), vXG, sWS, 1024 * k - 4096))
        A("global_load_dwordx2 %s, %s, %s offset:%d sc1" % (vr(E + 4 * k + 2, 2), vXG, sWS, 1024 * k - 4096 + 512))
    spin_check("L_svc_end")
    A("s_waitcnt vmcnt(0)")
    any_sentinel([vr(E + i) for i in range(32)])
    A("s_cbranch_vccz L_got1b")
    A("s_sleep 8")
    A("s_branch L_poll1b")
    A.label("L_got1b")
    for i in range(4):
        A("v_add_f32 %s, %s, %s" % (vr(R + i), vr(E + i), vr(E + 4 + i)))
    for k in range(2, 8):
        for i in range(4):
            A("v_add_f32 %s, %s, %s" % (vr(R + i), vr(R + i), vr(E + 4 * k + i)))
    for i in range(4):
        round_bf16(vr(R + i))
    C1 = -2.0 * LOG2E * 0.7978845608028654
    for i, t in ((0, t0), (1, t1)):
        x = vr(R + i)
        A("v_mul_f32 %s, %s, %s" % (t, x, x))
        A("v_mul_f32 %s, %s, %s" % (t, f32(0.044715), t))
        A("v_fma_f32 %s, %s, %s, %s" % (t, t, x, x))
        A("v_mul_f32 %s, %s, %s" % (t, f32(C1), t))
        A("v_exp_f32 %s, %s" % (t, t))
        A("v_add_f32 %s, 1.0, %s" % (t, t))
        A("v_rcp_f32 %s, %s" % (t, t))
        A("v_mul_f32 %s, %s, %s" % (t, t, x))
        round_bf16(t)
        A("v_mul_f32 %s, %s, %s" % (t, t, vr(R + 2 + i)))
        A("v_cvt_pk_bf16_f32 %s, %s, %s" % (t, t, t))
    A("ds_write_b64 %s, v[12:13] offset:%d" % (vL8, L_H))
    A.label("L_noffn")
    stamp()
    A("s_cmp_ge_u32 %s, 4" % sH)
    A("s_cbranch_scc1 L_nored1")
    A.label("L_pollc")
    A("global_load_dword %s, %s, %s sc1" % (t0, vDB, sDBG))
    spin_check("L_svc_end")
    A("s_waitcnt vmcnt(0)")
    A("v_cmp_gt_u32 vcc, 0x100, %s" % t0)
    A("s_cbranch_vccz L_gotc")
    A("s_sleep 32")
    A("s_branch L_pollc")
    A.label("L_gotc")
    A("s_lshl_b32 %s, %s, 7" % (sT0, sS))
    A("s_lshl_b32 %s, %s, 5" % (sT1, sH))
    A("s_add_u32 %s, %s, %s" % (sT0, sT0, sT1))
    A("v_and_b32 %s, 7, %s" % (t0, vLANE))
    A("v_lshrrev_b32 %s, 3, %s" % (t1, vLANE))
    A("v_lshlrev_b32 %s, 12, %s" % (vRD, t1))
    A("v_lshl_add_u32 %s, %s, 4, %s" % (vRD, t0, vRD))
    A("s_lshl_b32 %s, %s, 2" % (sT1, sT0))
    A("s_add_u32 %s, %s, 0x%x" % (sT1, sT1, X3A))
    A("v_add_u32 %s, %s, %s" % (vRD, sT1, vRD))
    A("v_and_b32 %s, 1, %s" % (t1, vG))
    A("v_lshl_add_u32 %s, %s, 2, %s" % (t0, t0, t1))
    A("v_add_u32 %s, %s, %s" % (t0, sT0, t0))
    A("v_lshlrev_b32 %s, 1, %s" % (vDB, t0))
    A("global_load_ushort %s, %s, %s" % (XA, vDB, sX))
    A("global_load_ushort %s, %s, %s offset:4" % (XB, vDB, sX))
    A.label("L_nored1")
    A("s_lshl_b32 %s, %s, 13" % (sT0, sH))
    A("s_add_u32 %s, %s, 0x%x" % (sT0, sT0, X2 + 4096))
    A("v_add_u32 %s, %s, %s" % (vXG, sT0, vL16))
    A("s_waitcnt vmcnt(0) lgkmcnt(0)")
    stamp()
    if stamps and dyn:
        A("s_cmp_lg_u32 %s, 0" % sS)
        A("s_cbranch_scc1 L_nosamp")
        A("s_mov_b64 exec, 1")
        A("s_lshl_b32 %s, %s, 8" % (sT0, sH))
        A("s_add_u32 %s, %s, 0x%x" % (sT0, sT0, CNT))
        A("v_mov_b32 v26, %s" % sT0)
        A("s_lshl_b32 %s, %s, 11" % (sT0, sH))
        A("s_add_u32 %s, %s, 0x300000" % (sT0, sT0))
        A("v_mov_b32 v27, %s" % sT0)
        A("s_movk_i32 %s, 250" % sCNT)
        A.label("L_samp")
        A("global_load_dword v29, v26, %s sc1" % sWS)
        A("s_waitcnt vmcnt(0)")
        A("s_memrealtime s[60:61]")
        A("s_waitcnt lgkmcnt(0)")
        A("v_mov_b32 v28, s60")
        A("global_store_dwordx2 v27, v[28:29], %s" % sWS)
        A("v_add_u32 v27, 8, v27")
        A("v_readfirstlane_b32 %s, v29" % sT0)
        A("s_sleep 8")
        A("s_sub_u32 %s, %s, 1" % (sCNT, sCNT))
        A("s_cmp_eq_u32 %s, 0" % sCNT)
        A("s_cbranch_scc1 L_sampdone")
        A("s_cmp_lt_u32 %s, 1856" % sT0)
        A("s_cbranch_scc1 L_samp")
        A.label("L_sampdone")
        A("s_mov_b64 exec, -1")
        A("s_waitcnt vmcnt(0)")
        A.label("L_nosamp")
    A("s_barrier")
    stamp()
    for w in range(W):
        A("ds_read_b128 %s, %s offset:%d" % (vr(E + 4 * w, 4), vL16, L_P3 + 1024 * w))
    A("s_waitcnt lgkmcnt(0)")
    combine8()
    canon()
    A("global_store_dwordx4 %s, %s, %s sc1" % (vX2, vr(R, 4), sWS))
    stamp()
    A.label("L_poll2")
    for k in range(8):
        A("global_load_dwordx4 %s, %s, %s offset:%d sc1" % (vr(E + 4 * k, 4), vXG, sWS, 1024 * k - 4096))
    spin_check("L_svc_end")
    A("s_waitcnt vmcnt(0)")
    any_sentinel([vr(E + i) for i in range(32)])
    A("s_cbranch_vccz L_got2")
    A("s_sleep 2")
    A("s_branch L_poll2")
    A.label("L_got2")
    stamp()
    combine8()
    A("v_rcp_f32 %s, %s" % (t0, vr(R + 3)))
    A("v_mul_f32 %s, %s, %s" % (t2, vr(R), t0))
    A("v_mul_f32 %s, %s, %s" % (t3, vr(R + 1), t0))
    A("v_cvt_pk_bf16_f32 %s, %s, %s" % (t2, t2, t2))
    A("v_cvt_pk_bf16_f32 %s, %s, %s" % (t3, t3, t3))
    A("ds_write_b64 %s, v[14:15] offset:%d" % (vL8, L_O))
    A("s_waitcnt lgkmcnt(0)")
    A("s_barrier")
    A("s_cmp_lt_u32 %s, 28" % sH)
    A("s_cselect_b32 %s, -1, 0" % sT1)
    A("s_barrier")
    sum8_lds(0)
    canon()
    A("s_mov_b32 exec_hi, %s" % sT1)
    A("global_store_dwordx4 %s, %s, %s sc1" % (vX3, vr(R, 4), sWS))
    A("s_mov_b64 exec, -1")
    stamp()
    A("s_cmp_ge_u32 %s, 4" % sH)
    A("s_cbranch_scc1 L_svc_end")
    A("v_add_u32 %s, 0x8000, %s" % (t1, vRD))
    A("v_add_u32 %s, 0x10000, %s" % (t2, vRD))
    A("v_add_u32 %s, 0x18000, %s" % (t3, vRD))
    A("v_add_u32 %s, 0x20000, %s" % (vr(R), vRD))
    A("v_add_u32 %s, 0x20000, %s" % (vr(R + 1), t1))
    A("v_add_u32 %s, 0x20000, %s" % (vr(R + 2), t2))
    A("v_add_u32 %s, 0x20000, %s" % (vr(R + 3), t3))
    A.label("L_poll3")
    for k, a in enumerate((vRD, t1, t2, t3, vr(R), vr(R + 1), vr(R + 2), vr(R + 3))):
        A("global_load_dwordx4 %s, %s, %s sc1" % (vr(E + 4 * k, 4), a, sWS))
    spin_check("L_svc_end")
    A("s_waitcnt vmcnt(0)")
    any_sentinel([vr(E + i) for i in range(32)])
    A("s_cbranch_vccz L_got3")
    A("s_sleep 2")
    A("s_branch L_poll3")
    A.label("L_got3")
    stamp()
    for half in (0, 16):
        for i in range(4):
            A("v_add_f32 %s, %s, %s" % (vr(E + half + i), vr(E + half + i), vr(E + half + 4 + i)))
            A("v_add_f32 %s, %s, %s" % (vr(E + half + 8 + i), vr(E + half + 8 + i), vr(E + half + 12 + i)))
        for i in range(4):
            A("v_add_f32 %s, %s, %s" % (vr(E + half + i), vr(E + half + i), vr(E + half + 8 + i)))
    for i in range(4):
        A("v_permlane32_swap_b32 %s, %s" % (vr(E + i), vr(E + 16 + i)))
    for i in range(4):
        A("v_add_f32 %s, %s, %s" % (vr(E + i), vr(E + i), vr(E + 16 + i)))
    A("v_permlane16_swap_b32 %s, %s" % (vr(E), vr(E + 1)))
    A("v_permlane16_swap_b32 %s, %s" % (vr(E + 2), vr(E + 3)))
    A("v_add_f32 %s, %s, %s" % (t0, vr(E), vr(E + 1)))
    A("v_add_f32 %s, %s, %s" % (t1, vr(E + 2), vr(E + 3)))
    A("v_add_f32_dpp %s, %s, %s row_ror:8 %s" % (t0, t0, t0, FULL))
    A("v_add_f32_dpp %s, %s, %s row_ror:8 %s" % (t1, t1, t1, FULL))
    round_bf16(t0)
    round_bf16(t1)
    A("v_permlane32_swap_b32 %s, %s" % (t0, t2))
    A("v_permlane32_swap_b32 %s, %s" % (t1, t3))
    A("v_lshlrev_b32 %s, 16, %s" % (XA, XA))
    A("v_lshlrev_b32 %s, 16, %s" % (XB, XB))
    A("v_add_f32 %s, %s, %s" % (t0, t0, XA))
    A("v_add_f32 %s, %s, %s" % (t1, t1, XB))
    round_bf16(t0)
    round_bf16(t1)
    A("v_add_f32 %s, %s, %s" % (t0, t0, t2))
    A("v_add_f32 %s, %s, %s" % (t1, t1, t3))
    A("v_cvt_pk_bf16_f32 %s, %s, %s" % (t0, t0, t0))
    A("v_cvt_pk_bf16_f32 %s, %s, %s" % (t1, t1, t1))
    A("s_mov_b64 exec, 0x00ff00ff")
    A("global_store_short %s, %s, %s" % (vDB, t0, sOUT))
    A("global_store_short %s, %s, %s offset:4" % (vDB, t1, sOUT))
    A("s_cmp_lg_u32 s2, 0")
    A("s_cbranch_scc1 L_noepoch")
    A("s_mov_b64 exec, 1")
    A("v_mov_b32 %s, 0x%x" % (t2, EPOCH))
    A("v_mov_b32 %s, %s" % (t3, sTAG))
    A("global_store_dword %s, %s, %s sc1" % (t2, t3, sWS))
    A.label("L_noepoch")
    stamp()
    A.label("L_svc_end")
    dump_stamps(14)
    A.label("L_end")
    A("s_endpgm")

    errs = A.verify_edges()
    if errs:
        raise RuntimeError("\n".join(errs))
    mv, ms = A.max_regs()
    nv = mv + 1
    acc = (nv + 3) // 4 * 4
    out = HEADER
    out += "; @launch grid=(256,1,1) block=(%d,1,1) lds=%d\n" % (64 * (W + 1), LDS_BYTES)
    out += ".amdgcn_target \"amdgcn-amd-amdhsa--gfx950\"\n.text\n"
    out += ".globl %s_kernel\n.p2align 8\n.type %s_kernel,@function\n%s_kernel:\n" % (NAME, NAME, NAME)
    out += A.text()
    out += """.section .rodata,"a"
.p2align 6
.amdhsa_kernel %s_kernel
  .amdhsa_next_free_vgpr %d
  .amdhsa_next_free_sgpr %d
  .amdhsa_accum_offset %d
  .amdhsa_group_segment_fixed_size 0
  .amdhsa_kernarg_size 96
  .amdhsa_user_sgpr_count 2
  .amdhsa_user_sgpr_kernarg_segment_ptr 1
  .amdhsa_system_sgpr_workgroup_id_x 1
  .amdhsa_float_denorm_mode_32 3
  .amdhsa_float_denorm_mode_16_64 3
.end_amdhsa_kernel
""" % (NAME, nv, ms + 1, acc)
    return out


if __name__ == "__main__":
    ap = argparse.ArgumentParser()
    ap.add_argument("-o", default="cdna_kernels/%s.s" % NAME)
    ap.add_argument("--ns", type=int, default=2)
    ap.add_argument("--stamps", action="store_true")
    ap.add_argument("--cap", type=int, default=8)
    ap.add_argument("--static", action="store_true")
    ap.add_argument("--rot", type=int, default=871)
    ap.add_argument("--wdef", action="store_true")
    a = ap.parse_args()
    txt = gen(NS=a.ns, C=a.cap, stamps=a.stamps, dyn=not a.static, rot=a.rot, wpol="" if a.wdef else " nt")
    open(a.o, "w").write(txt)
    print("wrote", a.o, len(txt), "bytes")
```

```python
import sys, struct, argparse
from asmlib import Asm

NAME = "parallel_sum__mha_block_cached__geglu_ffn__decode"

HEADER = """; Kernarg layout for this problem (96 bytes, ptrs only, base s[0:1]):
"""


def f32(x):
    return "0x%08x" % struct.unpack("<I", struct.pack("<f", x))[0]


LOG2E = 1.4426950408889634
SCALE = 128 ** -0.5
FULL = "row_mask:0xf bank_mask:0xf"

X1 = 0x200000
EPOCH = 0x38000
X1B = 0x40000
X2 = 0x80000
X3A = 0xC0000
X3B = 0xE0000
CNT = 0x400000
TS = 0x100000

L_P1 = 0
L_Q = 12288
L_H = 12544
L_O = 13056
L_P3 = 13568
LDS_BYTES = 13568 + 8192


def vr(a, n=1):
    return "v%d" % a if n == 1 else "v[%d:%d]" % (a, a + n - 1)


def gen(W=8, NS=2, C=8, stamps=False, spin=1 << 20, dyn=True, rot=871, wpol=" nt",
        CP=4, THR=1920, CB=8, tile_at="exit", skew=0, at_k=False, tlb=0, cstride=8):
    assert W == 8
    A = Asm()
    NIT = 4096 // (16 * W)
    STEP = W * 4096
    sX, sK, sV, sWQ, sWO, sWG, sWU, sWD, sOUT, sDBG, sWS = (
        "s[4:5]", "s[6:7]", "s[8:9]", "s[10:11]", "s[12:13]", "s[16:17]", "s[18:19]",
        "s[20:21]", "s[22:23]", "s[24:25]", "s[26:27]")
    sWAVE, sH, sS, sT0, sT1, sT2, sT3, sCNT, sSPIN = "s28", "s29", "s30", "s31", "s32", "s33", "s34", "s35", "s36"
    nstamp = [0]

    def stamp():
        if stamps:
            k = nstamp[0]
            A("s_memrealtime s[%d:%d]" % (64 + 2 * k, 65 + 2 * k))
            A("s_waitcnt lgkmcnt(0)")
            nstamp[0] += 1

    def dump_stamps(n):
        if not stamps:
            return
        A("s_waitcnt vmcnt(0) lgkmcnt(0)")
        A("s_mov_b64 exec, 1")
        A("s_lshl_b32 %s, s2, 4" % sT0)
        A("s_add_u32 %s, %s, %s" % (sT0, sT0, sWAVE))
        A("s_lshl_b32 %s, %s, 8" % (sT0, sT0))
        A("s_add_u32 %s, %s, 0x%x" % (sT0, sT0, TS))
        A("v_mov_b32 v1, %s" % sT0)
        for k in range(n):
            A("v_mov_b32 v2, s%d" % (64 + 2 * k))
            A("v_mov_b32 v3, s%d" % (65 + 2 * k))
            A("global_store_dwordx2 v1, v[2:3], %s offset:%d" % (sWS, 8 * k))
        A("s_getreg_b32 %s, hwreg(HW_REG_XCC_ID)" % sT1)
        A("s_getreg_b32 %s, hwreg(HW_REG_HW_ID)" % sT2)
        A("v_mov_b32 v2, %s" % sT1)
        A("v_mov_b32 v3, %s" % sT2)
        A("global_store_dwordx2 v1, v[2:3], %s offset:248" % sWS)

    def round_bf16(v):
        A("v_cvt_pk_bf16_f32 %s, %s, %s" % (v, v, v))
        A("v_lshlrev_b32 %s, 16, %s" % (v, v))

    def wave_sum(v, t, rows_uniform_from=None):
        steps = [8, 4, 2, 1] if rows_uniform_from is None else rows_uniform_from
        for r in steps:
            A("v_add_f32_dpp %s, %s, %s row_ror:%d %s" % (v, v, v, r, FULL))
        A("v_mov_b32 %s, %s" % (t, v))
        A("v_permlane16_swap_b32 %s, %s" % (v, t))
        A("v_add_f32 %s, %s, %s" % (v, v, t))
        A("v_mov_b32 %s, %s" % (t, v))
        A("v_permlane32_swap_b32 %s, %s" % (v, t))
        A("v_add_f32 %s, %s, %s" % (v, v, t))

    def make_masks(MASK, vC, t):
        A("v_and_b32 %s, 1, %s" % (t[0], vC))
        A("v_lshlrev_b32 %s, 4, %s" % (t[0], t[0]))
        A("v_mov_b32 %s, 0xffff" % t[1])
        A("v_lshlrev_b32 %s, %s, %s" % (t[1], t[0], t[1]))
        A("v_bfe_u32 %s, %s, 1, 2" % (t[0], vC))
        for r in range(4):
            A("v_cmp_eq_u32 vcc, %d, %s" % (r, t[0]))
            A("v_cndmask_b32 %s, 0, %s, vcc" % (vr(MASK + r), t[1]))

    A("s_cmp_ge_u32 s2, 256")
    A("s_cbranch_scc1 L_end")
    A("s_load_dwordx16 s[4:19], s[0:1], 0")
    A("s_load_dwordx8 s[20:27], s[0:1], 64")
    stamp_entry = None
    if stamps:
        A("s_memrealtime s[64:65]")
        nstamp[0] = 1
    A("v_lshrrev_b32 v1, 6, v0")
    A("s_lshr_b32 %s, s2, 3" % sH)
    A("v_readfirstlane_b32 %s, v1" % sWAVE)
    A("s_and_b32 %s, s2, 7" % sS)
    if skew:
        A("s_mul_i32 %s, %s, %d" % (sT0, sS, skew))
        A("s_add_u32 %s, %s, %s" % (sH, sH, sT0))
        A("s_and_b32 %s, %s, 31" % (sH, sH))
        A("s_lshl_b32 s2, %s, 3" % sH)
        A("s_or_b32 s2, s2, %s" % sS)
    A("v_and_b32 v2, 15, v0")
    A("v_bfe_u32 v3, v0, 4, 2")
    A("v_and_b32 v1, 63, v0")
    A("s_cmp_eq_u32 %s, %d" % (sWAVE, W))
    A("s_cbranch_scc1 L_service")

    vLANE, vC, vG = "v1", "v2", "v3"
    vKO, vVO = "v4", "v5"
    vM, vL, vT, vP, vU0, vU1 = "v6", "v7", "v8", "v9", "v10", "v11"
    MASK = 12
    AQ = 16
    ACCL, ACCH, DQK = 32, 36, 40
    S1, S2 = 44, 48
    KB = [52 + 32 * i for i in range(NS)]
    VB = [68 + 32 * i for i in range(NS)]
    WT = 52 + 32 * NS
    XO = WT + 48
    vAT, vCA, vONE = vr(WT + 32), vr(WT + 33), vr(WT + 34)
    sWID, sFLAG, sROT = "s37", "s38", "s39"
    sCUR = ["s%d" % (48 + b) for b in range(NS)]
    sOFF = ["s%d" % (52 + b) for b in range(NS)]
    vXS, vXOo, vWQo, vWGo = vM, vL, vT, vP

    A("v_lshlrev_b32 %s, 5, %s" % (vXS, vLANE))
    A("s_lshl_b32 %s, %s, 7" % (sT0, sS))
    A("s_lshl_b32 %s, %s, 4" % (sT1, sWAVE))
    A("s_add_u32 %s, %s, %s" % (sT0, sT0, sT1))
    A("v_lshl_add_u32 %s, %s, 2, %s" % (vU0, vG, sT0))
    A("v_lshlrev_b32 %s, 1, %s" % (vXOo, vU0))
    A("s_lshl_b32 %s, %s, 8" % (sT1, sH))
    A("v_lshl_add_u32 %s, %s, 4, %s" % (vU1, vC, sT1))
    A("v_lshl_add_u32 %s, %s, 13, %s" % (vWQo, vU0, vU1))
    A("s_movk_i32 %s, 7168" % sT2)
    A("s_cmp_lt_u32 %s, 28" % sH)
    A("s_cselect_b32 %s, %s, 0" % (sT2, sT2))
    A("s_cselect_b32 %s, -1, 0" % sT3)
    A("v_mul_u32_u24 %s, %s, %s" % (vWGo, sT2, vU0))
    A("v_and_b32 %s, %s, %s" % (vU1, sT3, vU1))
    A("v_add_u32 %s, %s, %s" % (vWGo, vWGo, vU1))
    A("v_lshlrev_b32 %s, 10, %s" % (vVO, vG))
    A("v_lshl_add_u32 %s, %s, 4, %s" % (vVO, vC, vVO))
    A("v_bfe_u32 %s, v0, 2, 2" % vU0)
    A("v_and_b32 %s, 3, v0" % vU1)
    A("v_lshlrev_b32 %s, 8, %s" % (vKO, vU0))
    A("v_lshl_add_u32 %s, %s, 6, %s" % (vKO, vG, vKO))
    A("v_lshl_add_u32 %s, %s, 4, %s" % (vKO, vU1, vKO))
    A("s_lshl_b32 %s, %s, 3" % (sWID, sS))
    A("s_add_u32 %s, %s, %s" % (sWID, sWID, sWAVE))
    A("s_lshl_b32 %s, %s, 23" % (sT0, sH))
    A("s_waitcnt lgkmcnt(0)")
    A("global_load_dwordx4 %s, %s, %s" % (vr(S1, 4), vXS, sX))
    A("global_load_dwordx4 %s, %s, %s offset:16" % (vr(S2, 4), vXS, sX))
    A("global_load_dwordx2 %s, %s, %s" % (vr(XO, 2), vXOo, sX))
    for u in range(4):
        A("global_load_dwordx4 %s, %s, %s%s" % (vr(WT + 4 * u, 4), vWQo, sWQ, wpol))
        if u < 3:
            A("v_add_u32 %s, 0x2000, %s" % (vWQo, vWQo))
    A("s_add_u32 s40, s6, %s" % sT0)
    A("s_addc_u32 s41, s7, 0")
    A("s_mov_b32 s42, 0x800000")
    A("s_mov_b32 s43, 0x20000")
    A("s_add_u32 s44, s8, %s" % sT0)
    A("s_addc_u32 s45, s9, 0")
    A("s_mov_b32 s46, 0x800000")
    A("s_mov_b32 s47, 0x20000")

    def load_w(dst, sb, tmp=vr(DQK)):
        A("v_mov_b32 %s, %s" % (tmp, vWGo))
        for u in range(4):
            A("global_load_dwordx4 %s, %s, %s%s" % (vr(dst + 4 * u, 4), tmp, sb, wpol))
            if u < 3:
                A("v_add_u32 %s, %s, %s" % (tmp, sT2, tmp))

    def load_k(b, soff):
        for t in range(4):
            A("buffer_load_dwordx4 %s, %s, s[40:43], %s offen offset:%d nt" % (vr(KB[b] + 4 * t, 4), vKO, soff, 1024 * t))

    def load_v(b, soff):
        for u in range(4):
            A("buffer_load_dwordx4 %s, %s, s[44:47], %s offen offset:%d nt" % (vr(VB[b] + 4 * u, 4), vVO, soff, 256 * u))

    make_masks(MASK, vC, [vU0, vU1])
    def chunk_off(b):
        A("s_add_u32 %s, %s, %s" % (sOFF[b], sCUR[b], sROT))
        A("s_and_b32 %s, %s, 2047" % (sOFF[b], sOFF[b]))
        A("s_lshl_b32 %s, %s, 12" % (sOFF[b], sOFF[b]))

    A("s_mul_i32 %s, %s, %d" % (sROT, sH, rot))
    for b in range(NS):
        A("s_add_u32 %s, %s, %d" % (sCUR[b], sWID, 64 * b))
        chunk_off(b)
    A("s_waitcnt vmcnt(4)")
    stamp()
    if CP >= 8:
        load_w(WT + 16, sWG)
    for i in range(8):
        src = vr(S1 + i)
        A("v_lshlrev_b32 %s, 16, %s" % (vr(AQ + 2 * i), src))
        A("v_and_b32 %s, 0xffff0000, %s" % (vr(AQ + 2 * i + 1), src))
    A("v_add_f32 %s, %s, %s" % (vM, vr(AQ), vr(AQ + 1)))
    A("v_add_f32 %s, %s, %s" % (vL, vr(AQ + 2), vr(AQ + 3)))
    for i in range(4, 16, 2):
        A("v_add_f32 %s, %s, %s" % (vM, vM, vr(AQ + i)))
        A("v_add_f32 %s, %s, %s" % (vL, vL, vr(AQ + i + 1)))
    A("v_add_f32 %s, %s, %s" % (vM, vM, vL))
    wave_sum(vM, vL)
    A("v_mul_f32 %s, %s, %s" % (vM, f32(1.0 / 1024), vM))
    for i in range(16):
        A("v_sub_f32 %s, %s, %s" % (vr(AQ + i), vr(AQ + i), vM))
    A("v_mul_f32 %s, %s, %s" % (vT, vr(AQ), vr(AQ)))
    A("v_mul_f32 %s, %s, %s" % (vL, vr(AQ + 1), vr(AQ + 1)))
    for i in range(2, 16, 2):
        A("v_fmac_f32 %s, %s, %s" % (vT, vr(AQ + i), vr(AQ + i)))
        A("v_fmac_f32 %s, %s, %s" % (vL, vr(AQ + i + 1), vr(AQ + i + 1)))
    A("v_add_f32 %s, %s, %s" % (vT, vT, vL))
    wave_sum(vT, vL)
    A("v_mul_f32 %s, %s, %s" % (vT, f32(1.0 / 1024), vT))
    round_bf16(vM)
    round_bf16(vT)
    A("v_add_f32 %s, %s, %s" % (vT, f32(1e-5), vT))
    round_bf16(vT)
    A("v_sqrt_f32 %s, %s" % (vT, vT))
    round_bf16(vT)
    A("v_rcp_f32 %s, %s" % (vT, vT))
    xo = [vr(S1 + i) for i in range(4)]
    A("v_lshlrev_b32 %s, 16, %s" % (xo[0], vr(XO)))
    A("v_and_b32 %s, 0xffff0000, %s" % (xo[1], vr(XO)))
    A("v_lshlrev_b32 %s, 16, %s" % (xo[2], vr(XO + 1)))
    A("v_and_b32 %s, 0xffff0000, %s" % (xo[3], vr(XO + 1)))
    for u in range(4):
        A("v_sub_f32 %s, %s, %s" % (xo[u], xo[u], vM))
    for u in range(4):
        A("v_cvt_pk_bf16_f32 %s, %s, %s" % (xo[u], xo[u], xo[u]))
    for u in range(4):
        A("v_lshlrev_b32 %s, 16, %s" % (xo[u], xo[u]))
    for u in range(4):
        A("v_mul_f32 %s, %s, %s" % (xo[u], xo[u], vT))
    for u in range(4):
        A("v_cvt_pk_bf16_f32 %s, %s, %s" % (xo[u], xo[u], xo[u]))
    for u in range(4):
        for r in range(4):
            A("v_and_b32 %s, %s, %s" % (vr(AQ + 4 * u + r), xo[u], vr(MASK + r)))
    A("v_and_b32 %s, 1, %s" % (vU0, vG))
    A("v_lshlrev_b32 %s, 4, %s" % (vU0, vU0))
    A("v_lshl_add_u32 %s, %s, 5, %s" % (vU0, vC, vU0))
    A("s_mul_i32 %s, %s, 1536" % (sT0, sWAVE))
    A("v_add_u32 %s, %s, %s" % (vU1, sT0, vU0))
    if CP >= 8:
        A("s_waitcnt vmcnt(4)")
        load_w(WT + 32, sWU)
    else:
        A("s_waitcnt vmcnt(0)")
        load_w(WT + 16, sWG)
    for u in range(4):
        A("v_mfma_f32_16x16x32_bf16 %s, %s, %s, %s" % (vr(DQK, 4), vr(AQ + 4 * u, 4), vr(WT + 4 * u, 4),
                                                     "0" if u == 0 else vr(DQK, 4)))
    A("ds_write_b128 %s, %s offset:%d" % (vU1, vr(DQK, 4), L_P1))
    A("s_waitcnt lgkmcnt(0)")
    stamp()
    A("s_barrier")
    PW = CP - 4
    if CP < 8:
        A("s_waitcnt vmcnt(%d)" % PW)
        load_w(WT + 32, sWU, vr(S1))
    A("s_waitcnt vmcnt(%d)" % PW)
    load_k(0, sOFF[0])
    A("s_waitcnt vmcnt(%d)" % PW)
    load_v(0, sOFF[0])
    for u in range(4):
        A("v_mfma_f32_16x16x32_bf16 %s, %s, %s, %s" % (vr(ACCL, 4), vr(AQ + 4 * u, 4), vr(WT + 16 + 4 * u, 4),
                                                     "0" if u == 0 else vr(ACCL, 4)))
        A("v_mfma_f32_16x16x32_bf16 %s, %s, %s, %s" % (vr(ACCH, 4), vr(AQ + 4 * u, 4), vr(WT + 32 + 4 * u, 4),
                                                     "0" if u == 0 else vr(ACCH, 4)))
    A("ds_write_b128 %s, %s offset:%d" % (vU1, vr(ACCL, 4), L_P1 + 512))
    A("ds_write_b128 %s, %s offset:%d" % (vU1, vr(ACCH, 4), L_P1 + 1024))
    A("s_lshl_b32 %s, %s, 7" % (sT0, sH))
    A("s_lshl_b32 %s, %s, 4" % (sT1, sWAVE))
    A("s_add_u32 %s, %s, %s" % (sT0, sT0, sT1))
    A("v_lshl_add_u32 %s, %s, 2, %s" % (vr(XO), vG, sT0))
    A("v_lshlrev_b32 %s, 11, %s" % (vr(XO), vr(XO)))
    A("s_lshl_b32 %s, %s, 8" % (sT0, sS))
    A("v_lshl_add_u32 %s, %s, 4, %s" % (vr(XO), vC, vr(XO)))
    A("v_add_u32 %s, %s, %s" % (vr(XO), sT0, vr(XO)))
    A("v_and_b32 %s, %s, %s" % (vr(XO + 1), sT3, vr(XO)))
    A("v_add_u32 %s, 0x1000, %s" % (vr(XO), vr(XO)))
    A("v_add_u32 %s, 0x1000, %s" % (vr(XO + 1), vr(XO + 1)))
    A("v_and_b32 %s, 3, %s" % (vT, vC))
    A("v_lshlrev_b32 %s, 4, %s" % (vT, vT))
    A("v_lshl_add_u32 %s, %s, 6, %s" % (vT, vG, vT))
    A("v_lshrrev_b32 %s, 2, %s" % (vP, vC))
    A("s_waitcnt lgkmcnt(0)")
    for i in range(4):
        A("v_mov_b32 %s, 0" % vr(ACCL + i))
        A("v_mov_b32 %s, 0" % vr(ACCH + i))
    A("v_mov_b32 %s, 0xff800000" % vM)
    A("v_mov_b32 %s, 0" % vL)
    A("s_sub_u32 %s, %s, 64" % (sT0, sWID))
    A("v_mov_b32 %s, %s" % (vAT, sT0))
    A("s_lshl_b32 %s, %s, %d" % (sT0, sH, cstride))
    A("s_add_u32 %s, %s, 0x%x" % (sT0, sT0, CNT))
    A("v_mov_b32 %s, %s" % (vCA, sT0))
    A("v_mov_b32 %s, 1" % vONE)
    A("s_mov_b32 %s, 0" % sFLAG)
    for b in range(1, NS):
        A("s_waitcnt vmcnt(%d)" % PW)
        load_k(b, sOFF[b])
        A("s_waitcnt vmcnt(%d)" % PW)
        load_v(b, sOFF[b])
    A("s_barrier")
    stamp()
    A("ds_read_b128 %s, %s offset:%d" % (vr(S1, 4), vT, L_Q))
    A("s_waitcnt lgkmcnt(0)")
    for t in range(4):
        A("v_cmp_eq_u32 vcc, %d, %s" % (t, vP))
        for r in range(4):
            A("v_cndmask_b32 %s, 0, %s, vcc" % (vr(AQ + 4 * t + r), vr(S1 + r)))

    resc = []

    def load_tile(dst, va, sb):
        for u in range(4):
            A("global_load_dwordx4 %s, %s, %s offset:%d%s" % (vr(dst + 4 * u, 4), va, sb, 2048 * (u - 2), wpol))

    assert NS == 2 and C <= 8 and CB <= 8

    def qk(b):
        for t in range(4):
            A("v_mfma_f32_16x16x32_bf16 %s, %s, %s, %s" % (vr(DQK, 4), vr(AQ + 4 * t, 4), vr(KB[b] + 4 * t, 4),
                                                         "0" if t == 0 else vr(DQK, 4)))

    def softmax_pv(b, tag, nv):
        A("v_mov_b32_dpp %s, %s quad_perm:[0,0,0,0] %s" % (vT, vr(DQK), FULL))
        A("v_mov_b32_dpp %s, %s quad_perm:[2,2,2,2] %s" % (vP, vr(DQK + 2), FULL))
        A("v_add_f32_dpp %s, %s, %s quad_perm:[1,1,1,1] %s" % (vT, vr(DQK + 1), vT, FULL))
        A("v_add_f32_dpp %s, %s, %s quad_perm:[3,3,3,3] %s" % (vP, vr(DQK + 3), vP, FULL))
        A("v_add_f32 %s, %s, %s" % (vT, vT, vP))
        round_bf16(vT)
        A("v_mul_f32 %s, %s, %s" % (vT, f32(SCALE), vT))
        round_bf16(vT)
        A("v_cmp_gt_f32 vcc, %s, %s" % (vT, vM))
        A("s_cbranch_vccnz L_resc_%s" % tag)
        A.label("L_back_%s" % tag)
        resc.append(tag)
        A("v_sub_f32 %s, %s, %s" % (vP, vT, vM))
        A("v_mul_f32 %s, %s, %s" % (vP, f32(LOG2E), vP))
        A("v_exp_f32 %s, %s" % (vP, vP))
        A("v_add_f32 %s, %s, %s" % (vL, vL, vP))
        A("v_cvt_pk_bf16_f32 %s, %s, %s" % (vP, vP, vP))
        A("v_and_b32 %s, %s, %s" % (vr(S1), vP, vr(MASK)))
        A("v_and_b32 %s, %s, %s" % (vr(S1 + 1), vP, vr(MASK + 1)))
        A("v_and_b32_dpp %s, %s, %s row_ror:4 %s" % (vr(S1 + 2), vP, vr(MASK + 2), FULL))
        A("v_and_b32_dpp %s, %s, %s row_ror:4 %s" % (vr(S1 + 3), vP, vr(MASK + 3), FULL))
        A("v_and_b32_dpp %s, %s, %s row_ror:12 %s" % (vr(S2), vP, vr(MASK), FULL))
        A("v_and_b32_dpp %s, %s, %s row_ror:12 %s" % (vr(S2 + 1), vP, vr(MASK + 1), FULL))
        A("v_and_b32 %s, %s, %s" % (vr(S2 + 2), vP, vr(MASK + 2)))
        A("v_and_b32 %s, %s, %s" % (vr(S2 + 3), vP, vr(MASK + 3)))
        A("s_waitcnt vmcnt(%d)" % nv)
        A("v_mfma_f32_16x16x32_bf16 %s, %s, %s, %s" % (vr(ACCL, 4), vr(S1, 4), vr(VB[b], 4), vr(ACCL, 4)))
        A("v_mfma_f32_16x16x32_bf16 %s, %s, %s, %s" % (vr(ACCH, 4), vr(S1, 4), vr(VB[b] + 8, 4), vr(ACCH, 4)))
        A("v_mfma_f32_16x16x32_bf16 %s, %s, %s, %s" % (vr(ACCL, 4), vr(S2, 4), vr(VB[b] + 4, 4), vr(ACCL, 4)))
        A("v_mfma_f32_16x16x32_bf16 %s, %s, %s, %s" % (vr(ACCH, 4), vr(S2, 4), vr(VB[b] + 12, 4), vr(ACCH, 4)))

    def tiles():
        load_tile(WT, vr(XO), sWO)
        load_tile(WT + 16, vr(XO + 1), sWD)

    def body(b, lp, cap, limit, target):
        tag = "%s%d" % (lp, b)
        A("s_waitcnt vmcnt(12)")
        qk(b)
        A("s_waitcnt vmcnt(%d)" % (cap - 4))
        A("v_readfirstlane_b32 %s, %s" % (sCUR[0], vAT))
        A("s_add_u32 %s, %s, %d" % (sCUR[0], sCUR[0], 64 * (NS + 1)))
        A.label("L_chk_%s" % tag)
        A("s_cmp_ge_u32 %s, %d" % (sCUR[0], limit))
        A("s_cbranch_scc1 %s%d" % (target, b))
        chunk_off(0)

        def ticket():
            if dyn:
                A("s_mov_b64 exec, 1")
                A("global_atomic_add %s, %s, %s, %s sc0" % (vAT, vCA, vONE, sWS))
                A("s_mov_b64 exec, -1")
            else:
                A("v_add_u32 %s, 64, %s" % (vAT, vAT))
        load_k(b, sOFF[0])
        if at_k:
            ticket()
        softmax_pv(b, tag, 12)
        A("s_waitcnt vmcnt(%d)" % (cap - 4 + (1 if at_k and dyn else 0)))
        if not at_k:
            ticket()
        load_v(b, sOFF[0])

    A.label("L_loopa")
    for b in range(NS):
        body(b, "a", C, THR, "L_chk_b")
    A("s_branch L_loopa")
    A.label("L_loopb")
    for b in range(NS):
        body(b, "b", CB, 2048, "L_drain")
    A("s_branch L_loopb")
    for b in range(NS):
        A.label("L_drain%d" % b)
        extra = 0
        if tile_at == "drain":
            tiles()
            extra = 8
        else:
            A("s_nop 3")
        softmax_pv(b, "d%d" % b, 8 + extra)
        A("s_waitcnt vmcnt(%d)" % (4 + extra))
        qk(b ^ 1)
        softmax_pv(b ^ 1, "e%d" % b, extra)
        if b == 0:
            A("s_branch L_exit")
    A.label("L_exit")
    if tile_at == "exit":
        tiles()
    else:
        A("s_nop 7")
    stamp()
    wave_sum(vL, vT, [4, 8])
    for i in range(4):
        A("v_permlane32_swap_b32 %s, %s" % (vr(ACCH + i), vr(S1 + i)))
    for i in range(4):
        A("v_add_f32 %s, %s, %s" % (vr(ACCL + i), vr(ACCL + i), vr(S1 + i)))
    A("s_lshl_b32 %s, %s, 10" % (sT0, sWAVE))
    A("v_lshl_add_u32 %s, %s, 1, %s" % (vT, vU0, sT0))
    A("v_lshl_add_u32 %s, %s, 4, %s" % (vP, vLANE, sT0))
    A("ds_write_b64 %s, %s offset:%d" % (vP, "v[6:7]", L_P3 + 8))
    A("s_mov_b32 exec_hi, 0")
    A("ds_write_b64 %s, %s offset:%d" % (vT, vr(ACCL, 2), L_P3))
    A("ds_write_b64 %s, %s offset:%d" % (vT, vr(ACCL + 2, 2), L_P3 + 16))
    A("s_mov_b64 exec, -1")
    A("s_lshl_b32 %s, %s, 6" % (sT0, sWAVE))
    A("v_lshl_add_u32 %s, %s, 4, %s" % (vT, vG, sT0))
    A("s_waitcnt lgkmcnt(0)")
    A("s_barrier")
    if tile_at == "bar3":
        tiles()
    for (src_off, tile, dst_off, wait) in ((L_H, WT + 16, L_P1 + 512, 0), (L_O, WT, L_P1, None)):
        A("ds_read_b128 %s, %s offset:%d" % (vr(S1, 4), vT, src_off))
        A("s_waitcnt lgkmcnt(0)")
        for u in range(4):
            for r in range(4):
                A("v_and_b32 %s, %s, %s" % (vr(AQ + 4 * u + r), vr(S1 + u), vr(MASK + r)))
        if wait is not None:
            A("s_waitcnt vmcnt(%d)" % wait)
        for u in range(4):
            A("v_mfma_f32_16x16x32_bf16 %s, %s, %s, %s" % (vr(DQK, 4), vr(AQ + 4 * u, 4), vr(tile + 4 * u, 4),
                                                         "0" if u == 0 else vr(DQK, 4)))
        A("ds_write_b128 %s, %s offset:%d" % (vU1, vr(DQK, 4), dst_off))
        A("s_waitcnt lgkmcnt(0)")
        A("s_barrier")
    dump_stamps(nstamp[0])
    A("s_endpgm")
    for tag in resc:
        A.label("L_resc_%s" % tag)
        A("s_nop 7")
        A("v_max_f32_dpp %s, %s, %s row_ror:4 %s" % (vP, vT, vT, FULL))
        A("v_max_f32_dpp %s, %s, %s row_ror:8 %s" % (vP, vP, vP, FULL))
        A("v_mov_b32 %s, %s" % (vr(S1), vP))
        A("v_permlane16_swap_b32 %s, %s" % (vP, vr(S1)))
        A("v_max_f32 %s, %s, %s" % (vP, vP, vr(S1)))
        A("v_mov_b32 %s, %s" % (vr(S1), vP))
        A("v_permlane32_swap_b32 %s, %s" % (vP, vr(S1)))
        A("v_max3_f32 %s, %s, %s, %s" % (vP, vP, vr(S1), vM))
        A("v_sub_f32 %s, %s, %s" % (vr(S1), vM, vP))
        A("v_mul_f32 %s, %s, %s" % (vr(S1), f32(LOG2E), vr(S1)))
        A("v_exp_f32 %s, %s" % (vr(S1), vr(S1)))
        A("v_mov_b32 %s, %s" % (vM, vP))
        for i in range(4):
            A("v_mul_f32 %s, %s, %s" % (vr(ACCL + i), vr(ACCL + i), vr(S1)))
            A("v_mul_f32 %s, %s, %s" % (vr(ACCH + i), vr(ACCH + i), vr(S1)))
        A("v_mul_f32 %s, %s, %s" % (vL, vL, vr(S1)))
        A("s_branch L_back_%s" % tag)

    A.label("L_service")
    nstamp[0] = 1 if stamps else 0
    vL16, vL8, vX2, vX3, vXG, vDB, vRD = "v4", "v5", "v6", "v7", "v8", "v9", "v10"
    t0, t1, t2, t3 = "v12", "v13", "v14", "v15"
    R = 16
    XA, XB = "v24", "v25"
    E = 32
    sTAG = "s40"
    nlab = [0]

    def spin_check(fail):
        A("s_sub_u32 %s, %s, 1" % (sSPIN, sSPIN))
        A("s_cmp_eq_u32 %s, 0" % sSPIN)
        A("s_cbranch_scc1 %s" % fail)

    def any_sentinel(regs):
        A("v_max3_u32 %s, %s, %s, %s" % (t0, regs[0], regs[1], regs[2]))
        k = 3
        while k + 1 < len(regs):
            A("v_max3_u32 %s, %s, %s, %s" % (t0, t0, regs[k], regs[k + 1]))
            k += 2
        if k < len(regs):
            A("v_max_u32 %s, %s, %s" % (t0, t0, regs[k]))
        A("v_cmp_eq_u32 vcc, -1, %s" % t0)

    def sum8_lds(off):
        for w in range(W):
            A("ds_read_b128 %s, %s offset:%d" % (vr(E + 4 * w, 4), vL16, L_P1 + 1536 * w + off))
        A("s_waitcnt lgkmcnt(%d)" % (W - 2))
        for i in range(4):
            A("v_add_f32 %s, %s, %s" % (vr(R + i), vr(E + i), vr(E + 4 + i)))
        for w in range(2, W):
            A("s_waitcnt lgkmcnt(%d)" % (W - 1 - w))
            for i in range(4):
                A("v_add_f32 %s, %s, %s" % (vr(R + i), vr(R + i), vr(E + 4 * w + i)))

    def combine8():
        m = [vr(E + 4 * k + 2) for k in range(8)]
        M = vr(R + 2)
        A("v_max3_f32 %s, %s, %s, %s" % (M, m[0], m[1], m[2]))
        A("v_max3_f32 %s, %s, %s, %s" % (t0, m[3], m[4], m[5]))
        A("v_max3_f32 %s, %s, %s, %s" % (M, M, m[6], m[7]))
        A("v_max_f32 %s, %s, %s" % (M, M, t0))
        for k in range(8):
            A("v_sub_f32 %s, %s, %s" % (m[k], m[k], M))
        for k in range(8):
            A("v_mul_f32 %s, %s, %s" % (m[k], f32(LOG2E), m[k]))
        for k in range(8):
            A("v_exp_f32 %s, %s" % (m[k], m[k]))
        for j in (0, 1, 3):
            A("v_mul_f32 %s, %s, %s" % (vr(R + j), m[0], vr(E + j)))
        for k in range(1, 8):
            for j in (0, 1, 3):
                A("v_fmac_f32 %s, %s, %s" % (vr(R + j), m[k], vr(E + 4 * k + j)))

    def canon(n=4):
        for i in range(n):
            A("v_min_u32 %s, -2, %s" % (vr(R + i), vr(R + i)))

    A("s_setprio 3")
    A("v_lshlrev_b32 %s, 4, %s" % (vL16, vLANE))
    A("v_lshlrev_b32 %s, 3, %s" % (vL8, vLANE))
    A("s_mov_b32 %s, %d" % (sSPIN, spin))
    A("s_lshl_b32 %s, s2, 10" % sT0)
    A("v_add_u32 %s, %s, %s" % (vX2, sT0, vL16))
    A("s_lshl_b32 %s, %s, 12" % (sT0, sH))
    A("s_lshl_b32 %s, %s, 9" % (sT1, sS))
    A("s_add_u32 %s, %s, %s" % (sT0, sT0, sT1))
    A("s_add_u32 %s, %s, 0x%x" % (sT0, sT0, X3A))
    A("v_and_b32 %s, 31, %s" % (t0, vLANE))
    A("v_lshlrev_b32 %s, 4, %s" % (t0, t0))
    A("v_lshrrev_b32 %s, 5, %s" % (t1, vLANE))
    A("v_lshl_add_u32 %s, %s, 17, %s" % (vX3, t1, t0))
    A("v_add_u32 %s, %s, %s" % (vX3, sT0, vX3))
    for i in range(4):
        A("v_mov_b32 %s, -1" % vr(R + i))
    A("s_cmp_lt_u32 %s, 28" % sH)
    A("s_cselect_b32 %s, 64, 32" % sT1)
    A("v_cmp_gt_u32 vcc, %s, %s" % (sT1, vLANE))
    A("v_cndmask_b32 %s, 0, -1, vcc" % vr(R + 4))
    A("v_mov_b32 %s, %s" % (vr(R + 5), vr(R + 4)))
    A("v_mov_b32 %s, %s" % (vr(R + 6), vr(R + 4)))
    A("v_mov_b32 %s, %s" % (vr(R + 7), vr(R + 4)))
    A("v_add_u32 %s, 0x%x, %s" % (t2, X1B, vX2))
    A("v_add_u32 %s, 0x%x, %s" % (vX2, X2, vX2))
    A("v_add_u32 %s, 0x%x, %s" % (t3, X1 - X2, vX2))
    A("s_waitcnt lgkmcnt(0)")
    A("s_load_dword %s, %s, 0x%x" % (sTAG, sWS, EPOCH))
    A("global_store_dwordx4 %s, %s, %s sc1" % (vX2, vr(R, 4), sWS))
    A("global_store_dwordx4 %s, %s, %s sc1" % (t2, vr(R, 4), sWS))
    A("global_store_dwordx4 %s, %s, %s sc1" % (vX3, vr(R + 4, 4), sWS))
    A("s_lshl_b32 %s, %s, %d" % (sT0, sH, cstride))
    A("s_add_u32 %s, %s, 0x%x" % (sT0, sT0, CNT))
    A("v_mov_b32 %s, %s" % (t0, sT0))
    A("v_mov_b32 %s, 0" % t1)
    A("s_mov_b64 exec, 1")
    A("global_store_dword %s, %s, %s sc1" % (t0, t1, sWS))
    A("s_mov_b64 exec, -1")
    A("s_lshl_b32 %s, %s, 13" % (sT0, sH))
    A("s_add_u32 %s, %s, 0x%x" % (sT0, sT0, X1 + 4096))
    A("v_add_u32 %s, %s, %s" % (vXG, sT0, vL16))
    A("v_mov_b32 %s, 0" % vRD)
    A("v_lshlrev_b32 %s, 2, %s" % (t1, vLANE))
    A("s_waitcnt lgkmcnt(0)")
    A("s_mul_i32 %s, %s, 0x9e3779b1" % (sTAG, sTAG))
    A("s_add_u32 %s, %s, 0x7f4a7c15" % (sTAG, sTAG))
    A("v_mov_b32 %s, %s" % (vr(R + 1), sTAG))
    A("v_mov_b32 %s, %s" % (vr(R + 3), sTAG))
    A("s_waitcnt vmcnt(0)")
    A("s_barrier")
    stamp()
    for w in range(W):
        A("ds_read_b64 %s, %s offset:%d" % (vr(E + 2 * w, 2), vL8, L_P1 + 1536 * w))
    A("s_waitcnt lgkmcnt(%d)" % (W - 2))
    A("v_add_f32 %s, %s, %s" % (vr(R), vr(E), vr(E + 2)))
    A("v_add_f32 %s, %s, %s" % (vr(R + 2), vr(E + 1), vr(E + 3)))
    for w in range(2, W):
        A("s_waitcnt lgkmcnt(%d)" % (W - 1 - w))
        A("v_add_f32 %s, %s, %s" % (vr(R), vr(R), vr(E + 2 * w)))
        A("v_add_f32 %s, %s, %s" % (vr(R + 2), vr(R + 2), vr(E + 2 * w + 1)))
    A("global_store_dwordx4 %s, %s, %s sc1" % (t3, vr(R, 4), sWS))
    stamp()
    A.label("L_poll1")
    for k in range(8):
        A("global_load_dwordx4 %s, %s, %s offset:%d sc1" % (vr(E + 4 * k, 4), vXG, sWS, 1024 * k - 4096))
    spin_check("L_svc_end")
    A("s_waitcnt vmcnt(0)")
    tg = [vr(E + 2 * i + 1) for i in range(16)]
    A("v_max3_u32 %s, %s, %s, %s" % (t0, tg[0], tg[1], sTAG))
    A("v_min3_u32 %s, %s, %s, %s" % (t3, tg[0], tg[1], sTAG))
    for i in range(2, 16, 2):
        A("v_max3_u32 %s, %s, %s, %s" % (t0, t0, tg[i], tg[i + 1]))
        A("v_min3_u32 %s, %s, %s, %s" % (t3, t3, tg[i], tg[i + 1]))
    A("v_cmp_ne_u32 vcc, %s, %s" % (t0, t3))
    A("s_cbranch_vccnz L_poll1")
    stamp()
    A("v_add_f32 %s, %s, %s" % (vr(R), vr(E), vr(E + 4)))
    A("v_add_f32 %s, %s, %s" % (vr(R + 1), vr(E + 2), vr(E + 6)))
    for k in range(2, 8):
        A("v_add_f32 %s, %s, %s" % (vr(R), vr(R), vr(E + 4 * k)))
        A("v_add_f32 %s, %s, %s" % (vr(R + 1), vr(R + 1), vr(E + 4 * k + 2)))
    A("v_cvt_pk_bf16_f32 %s, %s, %s" % (t0, vr(R), vr(R + 1)))
    A("ds_write_b32 %s, %s offset:%d" % (t1, t0, L_Q))
    A("s_waitcnt lgkmcnt(0)")
    A("s_barrier")
    stamp()
    A("v_mov_b32 %s, 0" % vDB)
    A("v_mov_b32 %s, 1" % t1)
    A("s_mov_b64 exec, 1")
    A("global_atomic_add %s, %s, %s" % (vDB, t1, sDBG))
    A("s_mov_b64 exec, -1")
    if tlb:
        A("s_lshl_b32 %s, %s, 23" % (sT0, sH))
        A("v_lshlrev_b32 %s, 17, %s" % (t0, vLANE))
        A("v_add_u32 %s, %s, %s" % (t0, sT0, t0))
        for i in range(tlb):
            A("global_load_dword %s, %s, %s nt" % (vr(E + 2 * i), t0, sK))
            A("global_load_dword %s, %s, %s nt" % (vr(E + 2 * i + 1), t0, sV))
            if i + 1 < tlb:
                A("v_add_u32 %s, 0x%x, %s" % (t0, (1 << 17) // tlb, t0))
        A("s_waitcnt vmcnt(0)")
    A("s_cmp_ge_u32 %s, 28" % sH)
    A("s_cbranch_scc1 L_noffn")
    sum8_lds(512)
    canon()
    A("global_store_dwordx4 %s, %s, %s sc1" % (t2, vr(R, 4), sWS))
    A("s_lshl_b32 %s, %s, 13" % (sT0, sH))
    A("s_add_u32 %s, %s, 0x%x" % (sT0, sT0, X1B + 4096))
    A("v_add_u32 %s, %s, %s" % (vXG, sT0, vL8))
    A.label("L_poll1b")
    for k in range(8):
        A("global_load_dwordx2 %s, %s, %s offset:%d sc1" % (vr(E + 4 * k, 2), vXG, sWS, 1024 * k - 4096))
        A("global_load_dwordx2 %s, %s, %s offset:%d sc1" % (vr(E + 4 * k + 2, 2), vXG, sWS, 1024 * k - 4096 + 512))
    spin_check("L_svc_end")
    A("s_waitcnt vmcnt(0)")
    any_sentinel([vr(E + i) for i in range(32)])
    A("s_cbranch_vccz L_got1b")
    A("s_sleep 8")
    A("s_branch L_poll1b")
    A.label("L_got1b")
    for i in range(4):
        A("v_add_f32 %s, %s, %s" % (vr(R + i), vr(E + i), vr(E + 4 + i)))
    for k in range(2, 8):
        for i in range(4):
            A("v_add_f32 %s, %s, %s" % (vr(R + i), vr(R + i), vr(E + 4 * k + i)))
    for i in range(4):
        round_bf16(vr(R + i))
    C1 = -2.0 * LOG2E * 0.7978845608028654
    for i, t in ((0, t0), (1, t1)):
        x = vr(R + i)
        A("v_mul_f32 %s, %s, %s" % (t, x, x))
        A("v_mul_f32 %s, %s, %s" % (t, f32(0.044715), t))
        A("v_fma_f32 %s, %s, %s, %s" % (t, t, x, x))
        A("v_mul_f32 %s, %s, %s" % (t, f32(C1), t))
        A("v_exp_f32 %s, %s" % (t, t))
        A("v_add_f32 %s, 1.0, %s" % (t, t))
        A("v_rcp_f32 %s, %s" % (t, t))
        A("v_mul_f32 %s, %s, %s" % (t, t, x))
        round_bf16(t)
        A("v_mul_f32 %s, %s, %s" % (t, t, vr(R + 2 + i)))
        A("v_cvt_pk_bf16_f32 %s, %s, %s" % (t, t, t))
    A("ds_write_b64 %s, v[12:13] offset:%d" % (vL8, L_H))
    A.label("L_noffn")
    stamp()
    A("s_cmp_ge_u32 %s, 4" % sH)
    A("s_cbranch_scc1 L_nored1")
    A.label("L_pollc")
    A("global_load_dword %s, %s, %s sc1" % (t0, vDB, sDBG))
    spin_check("L_svc_end")
    A("s_waitcnt vmcnt(0)")
    A("v_cmp_gt_u32 vcc, 0x100, %s" % t0)
    A("s_cbranch_vccz L_gotc")
    A("s_sleep 32")
    A("s_branch L_pollc")
    A.label("L_gotc")
    A("s_lshl_b32 %s, %s, 7" % (sT0, sS))
    A("s_lshl_b32 %s, %s, 5" % (sT1, sH))
    A("s_add_u32 %s, %s, %s" % (sT0, sT0, sT1))
    A("v_and_b32 %s, 7, %s" % (t0, vLANE))
    A("v_lshrrev_b32 %s, 3, %s" % (t1, vLANE))
    A("v_lshlrev_b32 %s, 12, %s" % (vRD, t1))
    A("v_lshl_add_u32 %s, %s, 4, %s" % (vRD, t0, vRD))
    A("s_lshl_b32 %s, %s, 2" % (sT1, sT0))
    A("s_add_u32 %s, %s, 0x%x" % (sT1, sT1, X3A))
    A("v_add_u32 %s, %s, %s" % (vRD, sT1, vRD))
    A("v_and_b32 %s, 1, %s" % (t1, vG))
    A("v_lshl_add_u32 %s, %s, 2, %s" % (t0, t0, t1))
    A("v_add_u32 %s, %s, %s" % (t0, sT0, t0))
    A("v_lshlrev_b32 %s, 1, %s" % (vDB, t0))
    A("global_load_ushort %s, %s, %s" % (XA, vDB, sX))
    A("global_load_ushort %s, %s, %s offset:4" % (XB, vDB, sX))
    A.label("L_nored1")
    A("s_lshl_b32 %s, %s, 13" % (sT0, sH))
    A("s_add_u32 %s, %s, 0x%x" % (sT0, sT0, X2 + 4096))
    A("v_add_u32 %s, %s, %s" % (vXG, sT0, vL16))
    A("s_waitcnt vmcnt(0) lgkmcnt(0)")
    stamp()
    if stamps and dyn:
        A("s_cmp_lg_u32 %s, 0" % sS)
        A("s_cbranch_scc1 L_nosamp")
        A("s_mov_b64 exec, 1")
        A("s_lshl_b32 %s, %s, %d" % (sT0, sH, cstride))
        A("s_add_u32 %s, %s, 0x%x" % (sT0, sT0, CNT))
        A("v_mov_b32 v26, %s" % sT0)
        A("s_lshl_b32 %s, %s, 11" % (sT0, sH))
        A("s_add_u32 %s, %s, 0x300000" % (sT0, sT0))
        A("v_mov_b32 v27, %s" % sT0)
        A("s_movk_i32 %s, 250" % sCNT)
        A.label("L_samp")
        A("global_load_dword v29, v26, %s sc1" % sWS)
        A("s_waitcnt vmcnt(0)")
        A("s_memrealtime s[60:61]")
        A("s_waitcnt lgkmcnt(0)")
        A("v_mov_b32 v28, s60")
        A("global_store_dwordx2 v27, v[28:29], %s" % sWS)
        A("v_add_u32 v27, 8, v27")
        A("v_readfirstlane_b32 %s, v29" % sT0)
        A("s_sleep 8")
        A("s_sub_u32 %s, %s, 1" % (sCNT, sCNT))
        A("s_cmp_eq_u32 %s, 0" % sCNT)
        A("s_cbranch_scc1 L_sampdone")
        A("s_cmp_lt_u32 %s, 1856" % sT0)
        A("s_cbranch_scc1 L_samp")
        A.label("L_sampdone")
        A("s_mov_b64 exec, -1")
        A("s_waitcnt vmcnt(0)")
        A.label("L_nosamp")
    A("s_barrier")
    stamp()
    for w in range(W):
        A("ds_read_b128 %s, %s offset:%d" % (vr(E + 4 * w, 4), vL16, L_P3 + 1024 * w))
    A("s_waitcnt lgkmcnt(0)")
    combine8()
    canon()
    A("global_store_dwordx4 %s, %s, %s sc1" % (vX2, vr(R, 4), sWS))
    stamp()
    A.label("L_poll2")
    for k in range(8):
        A("global_load_dwordx4 %s, %s, %s offset:%d sc1" % (vr(E + 4 * k, 4), vXG, sWS, 1024 * k - 4096))
    spin_check("L_svc_end")
    A("s_waitcnt vmcnt(0)")
    any_sentinel([vr(E + i) for i in range(32)])
    A("s_cbranch_vccz L_got2")
    A("s_sleep 2")
    A("s_branch L_poll2")
    A.label("L_got2")
    stamp()
    combine8()
    A("v_rcp_f32 %s, %s" % (t0, vr(R + 3)))
    A("v_mul_f32 %s, %s, %s" % (t2, vr(R), t0))
    A("v_mul_f32 %s, %s, %s" % (t3, vr(R + 1), t0))
    A("v_cvt_pk_bf16_f32 %s, %s, %s" % (t2, t2, t2))
    A("v_cvt_pk_bf16_f32 %s, %s, %s" % (t3, t3, t3))
    A("ds_write_b64 %s, v[14:15] offset:%d" % (vL8, L_O))
    A("s_waitcnt lgkmcnt(0)")
    A("s_barrier")
    A("s_cmp_lt_u32 %s, 28" % sH)
    A("s_cselect_b32 %s, -1, 0" % sT1)
    A("s_barrier")
    sum8_lds(0)
    canon()
    A("s_mov_b32 exec_hi, %s" % sT1)
    A("global_store_dwordx4 %s, %s, %s sc1" % (vX3, vr(R, 4), sWS))
    A("s_mov_b64 exec, -1")
    stamp()
    A("s_cmp_ge_u32 %s, 4" % sH)
    A("s_cbranch_scc1 L_svc_end")
    A("v_add_u32 %s, 0x8000, %s" % (t1, vRD))
    A("v_add_u32 %s, 0x10000, %s" % (t2, vRD))
    A("v_add_u32 %s, 0x18000, %s" % (t3, vRD))
    A("v_add_u32 %s, 0x20000, %s" % (vr(R), vRD))
    A("v_add_u32 %s, 0x20000, %s" % (vr(R + 1), t1))
    A("v_add_u32 %s, 0x20000, %s" % (vr(R + 2), t2))
    A("v_add_u32 %s, 0x20000, %s" % (vr(R + 3), t3))
    A.label("L_poll3")
    for k, a in enumerate((vRD, t1, t2, t3, vr(R), vr(R + 1), vr(R + 2), vr(R + 3))):
        A("global_load_dwordx4 %s, %s, %s sc1" % (vr(E + 4 * k, 4), a, sWS))
    spin_check("L_svc_end")
    A("s_waitcnt vmcnt(0)")
    any_sentinel([vr(E + i) for i in range(32)])
    A("s_cbranch_vccz L_got3")
    A("s_sleep 2")
    A("s_branch L_poll3")
    A.label("L_got3")
    stamp()
    for half in (0, 16):
        for i in range(4):
            A("v_add_f32 %s, %s, %s" % (vr(E + half + i), vr(E + half + i), vr(E + half + 4 + i)))
            A("v_add_f32 %s, %s, %s" % (vr(E + half + 8 + i), vr(E + half + 8 + i), vr(E + half + 12 + i)))
        for i in range(4):
            A("v_add_f32 %s, %s, %s" % (vr(E + half + i), vr(E + half + i), vr(E + half + 8 + i)))
    for i in range(4):
        A("v_permlane32_swap_b32 %s, %s" % (vr(E + i), vr(E + 16 + i)))
    for i in range(4):
        A("v_add_f32 %s, %s, %s" % (vr(E + i), vr(E + i), vr(E + 16 + i)))
    A("v_permlane16_swap_b32 %s, %s" % (vr(E), vr(E + 1)))
    A("v_permlane16_swap_b32 %s, %s" % (vr(E + 2), vr(E + 3)))
    A("v_add_f32 %s, %s, %s" % (t0, vr(E), vr(E + 1)))
    A("v_add_f32 %s, %s, %s" % (t1, vr(E + 2), vr(E + 3)))
    A("v_add_f32_dpp %s, %s, %s row_ror:8 %s" % (t0, t0, t0, FULL))
    A("v_add_f32_dpp %s, %s, %s row_ror:8 %s" % (t1, t1, t1, FULL))
    round_bf16(t0)
    round_bf16(t1)
    A("v_permlane32_swap_b32 %s, %s" % (t0, t2))
    A("v_permlane32_swap_b32 %s, %s" % (t1, t3))
    A("v_lshlrev_b32 %s, 16, %s" % (XA, XA))
    A("v_lshlrev_b32 %s, 16, %s" % (XB, XB))
    A("v_add_f32 %s, %s, %s" % (t0, t0, XA))
    A("v_add_f32 %s, %s, %s" % (t1, t1, XB))
    round_bf16(t0)
    round_bf16(t1)
    A("v_add_f32 %s, %s, %s" % (t0, t0, t2))
    A("v_add_f32 %s, %s, %s" % (t1, t1, t3))
    A("v_cvt_pk_bf16_f32 %s, %s, %s" % (t0, t0, t0))
    A("v_cvt_pk_bf16_f32 %s, %s, %s" % (t1, t1, t1))
    A("s_mov_b64 exec, 0x00ff00ff")
    A("global_store_short %s, %s, %s" % (vDB, t0, sOUT))
    A("global_store_short %s, %s, %s offset:4" % (vDB, t1, sOUT))
    A("s_cmp_lg_u32 s2, 0")
    A("s_cbranch_scc1 L_noepoch")
    A("s_mov_b64 exec, 1")
    A("v_mov_b32 %s, 0x%x" % (t2, EPOCH))
    A("v_mov_b32 %s, %s" % (t3, sTAG))
    A("global_store_dword %s, %s, %s sc1" % (t2, t3, sWS))
    A.label("L_noepoch")
    stamp()
    A.label("L_svc_end")
    dump_stamps(14)
    A.label("L_end")
    A("s_endpgm")

    errs = A.verify_edges()
    if errs:
        raise RuntimeError("\n".join(errs))
    mv, ms = A.max_regs()
    nv = mv + 1
    acc = (nv + 3) // 4 * 4
    out = HEADER
    out += "; @launch grid=(256,1,1) block=(%d,1,1) lds=%d\n" % (64 * (W + 1), LDS_BYTES)
    out += ".amdgcn_target \"amdgcn-amd-amdhsa--gfx950\"\n.text\n"
    out += ".globl %s_kernel\n.p2align 8\n.type %s_kernel,@function\n%s_kernel:\n" % (NAME, NAME, NAME)
    out += A.text()
    out += """.section .rodata,"a"
.p2align 6
.amdhsa_kernel %s_kernel
  .amdhsa_next_free_vgpr %d
  .amdhsa_next_free_sgpr %d
  .amdhsa_accum_offset %d
  .amdhsa_group_segment_fixed_size 0
  .amdhsa_kernarg_size 96
  .amdhsa_user_sgpr_count 2
  .amdhsa_user_sgpr_kernarg_segment_ptr 1
  .amdhsa_system_sgpr_workgroup_id_x 1
  .amdhsa_float_denorm_mode_32 3
  .amdhsa_float_denorm_mode_16_64 3
.end_amdhsa_kernel
""" % (NAME, nv, ms + 1, acc)
    return out


if __name__ == "__main__":
    ap = argparse.ArgumentParser()
    ap.add_argument("-o", default="cdna_kernels/%s.s" % NAME)
    ap.add_argument("--ns", type=int, default=2)
    ap.add_argument("--stamps", action="store_true")
    ap.add_argument("--cap", type=int, default=4)
    ap.add_argument("--static", action="store_true")
    ap.add_argument("--rot", type=int, default=0)
    ap.add_argument("--wdef", action="store_true")
    ap.add_argument("--cp", type=int, default=4)
    ap.add_argument("--thr", type=int, default=1920)
    ap.add_argument("--cb", type=int, default=8)
    ap.add_argument("--tile", default="exit")
    ap.add_argument("--skew", type=int, default=0)
    ap.add_argument("--atk", action="store_true")
    ap.add_argument("--tlb", type=int, default=0)
    ap.add_argument("--cstride", type=int, default=8)
    a = ap.parse_args()
    txt = gen(NS=a.ns, C=a.cap, stamps=a.stamps, dyn=not a.static, rot=a.rot, wpol="" if a.wdef else " nt",
              CP=a.cp, THR=a.thr, CB=a.cb, tile_at=a.tile, skew=a.skew, at_k=a.atk, tlb=a.tlb, cstride=a.cstride)
    open(a.o, "w").write(txt)
    print("wrote", a.o, len(txt), "bytes")
```

```python
import sys, struct, argparse
from asmlib import Asm

NAME = "parallel_sum__mha_block_cached__geglu_ffn__decode"

HEADER = """; Kernarg layout for this problem (96 bytes, ptrs only, base s[0:1]):
"""


def f32(x):
    return "0x%08x" % struct.unpack("<I", struct.pack("<f", x))[0]


LOG2E = 1.4426950408889634
SCALE = 128 ** -0.5
FULL = "row_mask:0xf bank_mask:0xf"

X1 = 0x200000
EPOCH = 0x38000
X1B = 0x40000
X2 = 0x80000
X3A = 0x280000
CNT = 0x400000
TS = 0x100000

L_P1 = 0
L_Q = 12288
L_H = 12544
L_O = 13056
L_P3 = 13568
LDS_BYTES = 13568 + 8192


def vr(a, n=1):
    return "v%d" % a if n == 1 else "v[%d:%d]" % (a, a + n - 1)


def gen(W=8, NS=2, C=8, stamps=False, spin=1 << 20, dyn=True, rot=871, wpol=" nt",
        CP=4, THR=1920, CB=8, tile_at="exit", skew=0, at_k=False, tlb=0, cstride=8, RS=4352, sl2=2, sl3=2, pair=False, mpoll=False,
        ctl=0, ctlD=6, ctlK=2, sub=0, deep=False):
    assert W == 8
    A = Asm()
    NIT = 4096 // (16 * W)
    STEP = W * 4096
    sX, sK, sV, sWQ, sWO, sWG, sWU, sWD, sOUT, sDBG, sWS = (
        "s[4:5]", "s[6:7]", "s[8:9]", "s[10:11]", "s[12:13]", "s[16:17]", "s[18:19]",
        "s[20:21]", "s[22:23]", "s[24:25]", "s[26:27]")
    sWAVE, sH, sS, sT0, sT1, sT2, sT3, sCNT, sSPIN = "s28", "s29", "s30", "s31", "s32", "s33", "s34", "s35", "s36"
    nstamp = [0]

    def stamp():
        if stamps:
            k = nstamp[0]
            A("s_memrealtime s[%d:%d]" % (64 + 2 * k, 65 + 2 * k))
            A("s_waitcnt lgkmcnt(0)")
            nstamp[0] += 1

    def dump_stamps(n):
        if not stamps:
            return
        A("s_waitcnt vmcnt(0) lgkmcnt(0)")
        A("s_mov_b64 exec, 1")
        A("s_lshl_b32 %s, s2, 4" % sT0)
        A("s_add_u32 %s, %s, %s" % (sT0, sT0, sWAVE))
        A("s_lshl_b32 %s, %s, 8" % (sT0, sT0))
        A("s_add_u32 %s, %s, 0x%x" % (sT0, sT0, TS))
        A("v_mov_b32 v1, %s" % sT0)
        for k in range(n):
            A("v_mov_b32 v2, s%d" % (64 + 2 * k))
            A("v_mov_b32 v3, s%d" % (65 + 2 * k))
            A("global_store_dwordx2 v1, v[2:3], %s offset:%d" % (sWS, 8 * k))
        A("s_getreg_b32 %s, hwreg(HW_REG_XCC_ID)" % sT1)
        A("s_getreg_b32 %s, hwreg(HW_REG_HW_ID)" % sT2)
        A("v_mov_b32 v2, %s" % sT1)
        A("v_mov_b32 v3, %s" % sT2)
        A("global_store_dwordx2 v1, v[2:3], %s offset:248" % sWS)

    def round_bf16(v):
        A("v_cvt_pk_bf16_f32 %s, %s, %s" % (v, v, v))
        A("v_lshlrev_b32 %s, 16, %s" % (v, v))

    def wave_sum(v, t, rows_uniform_from=None):
        steps = [8, 4, 2, 1] if rows_uniform_from is None else rows_uniform_from
        for r in steps:
            A("v_add_f32_dpp %s, %s, %s row_ror:%d %s" % (v, v, v, r, FULL))
        A("v_mov_b32 %s, %s" % (t, v))
        A("v_permlane16_swap_b32 %s, %s" % (v, t))
        A("v_add_f32 %s, %s, %s" % (v, v, t))
        A("v_mov_b32 %s, %s" % (t, v))
        A("v_permlane32_swap_b32 %s, %s" % (v, t))
        A("v_add_f32 %s, %s, %s" % (v, v, t))

    def make_masks(MASK, vC, t):
        A("v_and_b32 %s, 1, %s" % (t[0], vC))
        A("v_lshlrev_b32 %s, 4, %s" % (t[0], t[0]))
        A("v_mov_b32 %s, 0xffff" % t[1])
        A("v_lshlrev_b32 %s, %s, %s" % (t[1], t[0], t[1]))
        A("v_bfe_u32 %s, %s, 1, 2" % (t[0], vC))
        for r in range(4):
            A("v_cmp_eq_u32 vcc, %d, %s" % (r, t[0]))
            A("v_cndmask_b32 %s, 0, %s, vcc" % (vr(MASK + r), t[1]))

    A("s_cmp_ge_u32 s2, 256")
    A("s_cbranch_scc1 L_end")
    A("s_load_dwordx16 s[4:19], s[0:1], 0")
    A("s_load_dwordx8 s[20:27], s[0:1], 64")
    stamp_entry = None
    if stamps:
        A("s_memrealtime s[64:65]")
        nstamp[0] = 1
    A("v_lshrrev_b32 v1, 6, v0")
    A("s_lshr_b32 %s, s2, 3" % sH)
    A("v_readfirstlane_b32 %s, v1" % sWAVE)
    A("s_and_b32 %s, s2, 7" % sS)
    if skew:
        A("s_mul_i32 %s, %s, %d" % (sT0, sS, skew))
        A("s_add_u32 %s, %s, %s" % (sH, sH, sT0))
        A("s_and_b32 %s, %s, 31" % (sH, sH))
        A("s_lshl_b32 s2, %s, 3" % sH)
        A("s_or_b32 s2, s2, %s" % sS)
    A("v_and_b32 v2, 15, v0")
    A("v_bfe_u32 v3, v0, 4, 2")
    A("v_and_b32 v1, 63, v0")
    A("s_cmp_eq_u32 %s, %d" % (sWAVE, W))
    A("s_cbranch_scc1 L_service")

    vLANE, vC, vG = "v1", "v2", "v3"
    vKO, vVO = "v4", "v5"
    vM, vL, vT, vP, vU0, vU1 = "v6", "v7", "v8", "v9", "v10", "v11"
    MASK = 12
    AQ = 16
    ACCL, ACCH, DQK = 32, 36, 40
    S1, S2 = 44, 48
    KB = [52 + 32 * i for i in range(NS)]
    VB = [68 + 32 * i for i in range(NS)]
    WT = 52 + 32 * NS
    XO = WT + 48
    vAT, vCA, vONE = vr(WT + 32), vr(WT + 33), vr(WT + 34)
    sWID, sFLAG, sROT = "s37", "s38", "s39"
    sCUR = ["s%d" % (48 + b) for b in range(NS)]
    sOFF = ["s%d" % (52 + b) for b in range(NS)]
    vXS, vXOo, vWQo, vWGo = vM, vL, vT, vP

    A("v_lshlrev_b32 %s, 5, %s" % (vXS, vLANE))
    A("s_lshl_b32 %s, %s, 7" % (sT0, sS))
    A("s_lshl_b32 %s, %s, 4" % (sT1, sWAVE))
    A("s_add_u32 %s, %s, %s" % (sT0, sT0, sT1))
    A("v_lshl_add_u32 %s, %s, 2, %s" % (vU0, vG, sT0))
    A("v_lshlrev_b32 %s, 1, %s" % (vXOo, vU0))
    A("s_lshl_b32 %s, %s, 8" % (sT1, sH))
    A("v_lshl_add_u32 %s, %s, 4, %s" % (vU1, vC, sT1))
    A("v_lshl_add_u32 %s, %s, 13, %s" % (vWQo, vU0, vU1))
    A("s_movk_i32 %s, 7168" % sT2)
    A("s_cmp_lt_u32 %s, 28" % sH)
    A("s_cselect_b32 %s, %s, 0" % (sT2, sT2))
    A("s_cselect_b32 %s, -1, 0" % sT3)
    A("v_mul_u32_u24 %s, %s, %s" % (vWGo, sT2, vU0))
    A("v_and_b32 %s, %s, %s" % (vU1, sT3, vU1))
    A("v_add_u32 %s, %s, %s" % (vWGo, vWGo, vU1))
    A("v_lshlrev_b32 %s, 10, %s" % (vVO, vG))
    A("v_lshl_add_u32 %s, %s, 4, %s" % (vVO, vC, vVO))
    A("v_bfe_u32 %s, v0, 2, 2" % vU0)
    A("v_and_b32 %s, 3, v0" % vU1)
    A("v_lshlrev_b32 %s, 8, %s" % (vKO, vU0))
    A("v_lshl_add_u32 %s, %s, 6, %s" % (vKO, vG, vKO))
    A("v_lshl_add_u32 %s, %s, 4, %s" % (vKO, vU1, vKO))
    A("s_lshl_b32 %s, %s, 3" % (sWID, sS))
    A("s_add_u32 %s, %s, %s" % (sWID, sWID, sWAVE))
    A("s_lshl_b32 %s, %s, 23" % (sT0, sH))
    A("s_waitcnt lgkmcnt(0)")
    A("global_load_dwordx4 %s, %s, %s" % (vr(S1, 4), vXS, sX))
    A("global_load_dwordx4 %s, %s, %s offset:16" % (vr(S2, 4), vXS, sX))
    A("global_load_dwordx2 %s, %s, %s" % (vr(XO, 2), vXOo, sX))
    for u in range(4):
        A("global_load_dwordx4 %s, %s, %s%s" % (vr(WT + 4 * u, 4), vWQo, sWQ, wpol))
        if u < 3:
            A("v_add_u32 %s, 0x2000, %s" % (vWQo, vWQo))
    A("s_add_u32 s40, s6, %s" % sT0)
    A("s_addc_u32 s41, s7, 0")
    A("s_mov_b32 s42, 0x800000")
    A("s_mov_b32 s43, 0x20000")
    A("s_add_u32 s44, s8, %s" % sT0)
    A("s_addc_u32 s45, s9, 0")
    A("s_mov_b32 s46, 0x800000")
    A("s_mov_b32 s47, 0x20000")

    def load_w(dst, sb, tmp=vr(DQK)):
        A("v_mov_b32 %s, %s" % (tmp, vWGo))
        for u in range(4):
            A("global_load_dwordx4 %s, %s, %s%s" % (vr(dst + 4 * u, 4), tmp, sb, wpol))
            if u < 3:
                A("v_add_u32 %s, %s, %s" % (tmp, sT2, tmp))

    def load_k(b, soff, mid=None):
        for t in range(4):
            if t == 2 and mid is not None:
                A("s_waitcnt vmcnt(%d)" % mid)
            A("buffer_load_dwordx4 %s, %s, s[40:43], %s offen offset:%d nt" % (vr(KB[b] + 4 * t, 4), vKO, soff, 1024 * t))

    def load_v(b, soff, mid=None):
        for u in range(4):
            if u == 2 and mid is not None:
                A("s_waitcnt vmcnt(%d)" % mid)
            A("buffer_load_dwordx4 %s, %s, s[44:47], %s offen offset:%d nt" % (vr(VB[b] + 4 * u, 4), vVO, soff, 256 * u))

    make_masks(MASK, vC, [vU0, vU1])
    def chunk_off(b):
        if sub:
            lb = 6 - sub
            A("s_bfe_u32 %s, %s, 0x%x" % (sT0, sCUR[b], (sub << 16) | lb))
            A("s_lshr_b32 %s, %s, 6" % (sT1, sCUR[b]))
            A("s_lshl_b32 %s, %s, %d" % (sT0, sT0, 11 - sub))
            A("s_lshl_b32 %s, %s, %d" % (sT1, sT1, lb))
            A("s_and_b32 %s, %s, %d" % (sOFF[b], sCUR[b], (1 << lb) - 1))
            A("s_or_b32 %s, %s, %s" % (sT0, sT0, sT1))
            A("s_or_b32 %s, %s, %s" % (sOFF[b], sOFF[b], sT0))
            A("s_add_u32 %s, %s, %s" % (sOFF[b], sOFF[b], sROT))
        else:
            A("s_add_u32 %s, %s, %s" % (sOFF[b], sCUR[b], sROT))
        A("s_and_b32 %s, %s, 2047" % (sOFF[b], sOFF[b]))
        A("s_lshl_b32 %s, %s, 12" % (sOFF[b], sOFF[b]))

    A("s_mul_i32 %s, %s, %d" % (sROT, sH, rot))
    for b in range(NS):
        A("s_add_u32 %s, %s, %d" % (sCUR[b], sWID, 64 * b))
        chunk_off(b)
    A("s_waitcnt vmcnt(4)")
    stamp()
    if CP >= 8:
        load_w(WT + 16, sWG)
    for i in range(8):
        src = vr(S1 + i)
        A("v_lshlrev_b32 %s, 16, %s" % (vr(AQ + 2 * i), src))
        A("v_and_b32 %s, 0xffff0000, %s" % (vr(AQ + 2 * i + 1), src))
    A("v_add_f32 %s, %s, %s" % (vM, vr(AQ), vr(AQ + 1)))
    A("v_add_f32 %s, %s, %s" % (vL, vr(AQ + 2), vr(AQ + 3)))
    for i in range(4, 16, 2):
        A("v_add_f32 %s, %s, %s" % (vM, vM, vr(AQ + i)))
        A("v_add_f32 %s, %s, %s" % (vL, vL, vr(AQ + i + 1)))
    A("v_add_f32 %s, %s, %s" % (vM, vM, vL))
    wave_sum(vM, vL)
    A("v_mul_f32 %s, %s, %s" % (vM, f32(1.0 / 1024), vM))
    for i in range(16):
        A("v_sub_f32 %s, %s, %s" % (vr(AQ + i), vr(AQ + i), vM))
    A("v_mul_f32 %s, %s, %s" % (vT, vr(AQ), vr(AQ)))
    A("v_mul_f32 %s, %s, %s" % (vL, vr(AQ + 1), vr(AQ + 1)))
    for i in range(2, 16, 2):
        A("v_fmac_f32 %s, %s, %s" % (vT, vr(AQ + i), vr(AQ + i)))
        A("v_fmac_f32 %s, %s, %s" % (vL, vr(AQ + i + 1), vr(AQ + i + 1)))
    A("v_add_f32 %s, %s, %s" % (vT, vT, vL))
    wave_sum(vT, vL)
    A("v_mul_f32 %s, %s, %s" % (vT, f32(1.0 / 1024), vT))
    round_bf16(vM)
    round_bf16(vT)
    A("v_add_f32 %s, %s, %s" % (vT, f32(1e-5), vT))
    round_bf16(vT)
    A("v_sqrt_f32 %s, %s" % (vT, vT))
    round_bf16(vT)
    A("v_rcp_f32 %s, %s" % (vT, vT))
    xo = [vr(S1 + i) for i in range(4)]
    A("v_lshlrev_b32 %s, 16, %s" % (xo[0], vr(XO)))
    A("v_and_b32 %s, 0xffff0000, %s" % (xo[1], vr(XO)))
    A("v_lshlrev_b32 %s, 16, %s" % (xo[2], vr(XO + 1)))
    A("v_and_b32 %s, 0xffff0000, %s" % (xo[3], vr(XO + 1)))
    for u in range(4):
        A("v_sub_f32 %s, %s, %s" % (xo[u], xo[u], vM))
    for u in range(4):
        A("v_cvt_pk_bf16_f32 %s, %s, %s" % (xo[u], xo[u], xo[u]))
    for u in range(4):
        A("v_lshlrev_b32 %s, 16, %s" % (xo[u], xo[u]))
    for u in range(4):
        A("v_mul_f32 %s, %s, %s" % (xo[u], xo[u], vT))
    for u in range(4):
        A("v_cvt_pk_bf16_f32 %s, %s, %s" % (xo[u], xo[u], xo[u]))
    for u in range(4):
        for r in range(4):
            A("v_and_b32 %s, %s, %s" % (vr(AQ + 4 * u + r), xo[u], vr(MASK + r)))
    A("v_and_b32 %s, 1, %s" % (vU0, vG))
    A("v_lshlrev_b32 %s, 4, %s" % (vU0, vU0))
    A("v_lshl_add_u32 %s, %s, 5, %s" % (vU0, vC, vU0))
    A("s_mul_i32 %s, %s, 1536" % (sT0, sWAVE))
    A("v_add_u32 %s, %s, %s" % (vU1, sT0, vU0))
    if CP >= 8:
        A("s_waitcnt vmcnt(4)")
        load_w(WT + 32, sWU)
    else:
        A("s_waitcnt vmcnt(0)")
        load_w(WT + 16, sWG)
    for u in range(4):
        A("v_mfma_f32_16x16x32_bf16 %s, %s, %s, %s" % (vr(DQK, 4), vr(AQ + 4 * u, 4), vr(WT + 4 * u, 4),
                                                     "0" if u == 0 else vr(DQK, 4)))
    A("ds_write_b128 %s, %s offset:%d" % (vU1, vr(DQK, 4), L_P1))
    A("s_waitcnt lgkmcnt(0)")
    stamp()
    A("s_barrier")
    PW = CP - 4
    if CP < 8:
        A("s_waitcnt vmcnt(%d)" % PW)
        load_w(WT + 32, sWU, vr(S1))
    A("s_waitcnt vmcnt(%d)" % PW)
    load_k(0, sOFF[0])
    A("s_waitcnt vmcnt(%d)" % PW)
    load_v(0, sOFF[0])
    for u in range(4):
        A("v_mfma_f32_16x16x32_bf16 %s, %s, %s, %s" % (vr(ACCL, 4), vr(AQ + 4 * u, 4), vr(WT + 16 + 4 * u, 4),
                                                     "0" if u == 0 else vr(ACCL, 4)))
        A("v_mfma_f32_16x16x32_bf16 %s, %s, %s, %s" % (vr(ACCH, 4), vr(AQ + 4 * u, 4), vr(WT + 32 + 4 * u, 4),
                                                     "0" if u == 0 else vr(ACCH, 4)))
    A("ds_write_b128 %s, %s offset:%d" % (vU1, vr(ACCL, 4), L_P1 + 512))
    A("ds_write_b128 %s, %s offset:%d" % (vU1, vr(ACCH, 4), L_P1 + 1024))
    A("s_lshl_b32 %s, %s, 7" % (sT0, sH))
    A("s_lshl_b32 %s, %s, 4" % (sT1, sWAVE))
    A("s_add_u32 %s, %s, %s" % (sT0, sT0, sT1))
    A("v_lshl_add_u32 %s, %s, 2, %s" % (vr(XO), vG, sT0))
    A("v_lshlrev_b32 %s, 11, %s" % (vr(XO), vr(XO)))
    A("s_lshl_b32 %s, %s, 8" % (sT0, sS))
    A("v_lshl_add_u32 %s, %s, 4, %s" % (vr(XO), vC, vr(XO)))
    A("v_add_u32 %s, %s, %s" % (vr(XO), sT0, vr(XO)))
    A("v_and_b32 %s, %s, %s" % (vr(XO + 1), sT3, vr(XO)))
    A("v_add_u32 %s, 0x1000, %s" % (vr(XO), vr(XO)))
    A("v_add_u32 %s, 0x1000, %s" % (vr(XO + 1), vr(XO + 1)))
    A("v_and_b32 %s, 3, %s" % (vT, vC))
    A("v_lshlrev_b32 %s, 4, %s" % (vT, vT))
    A("v_lshl_add_u32 %s, %s, 6, %s" % (vT, vG, vT))
    A("v_lshrrev_b32 %s, 2, %s" % (vP, vC))
    A("s_waitcnt lgkmcnt(0)")
    for i in range(4):
        A("v_mov_b32 %s, 0" % vr(ACCL + i))
        A("v_mov_b32 %s, 0" % vr(ACCH + i))
    A("v_mov_b32 %s, 0xff800000" % vM)
    A("v_mov_b32 %s, 0" % vL)
    A("s_sub_u32 %s, %s, 64" % (sT0, sWID))
    A("s_and_b32 %s, %s, 0xffff" % (sT0, sT0))
    A("v_mov_b32 %s, %s" % (vAT, sT0))
    A("s_lshl_b32 %s, %s, %d" % (sT0, sH, cstride))
    A("s_add_u32 %s, %s, 0x%x" % (sT0, sT0, CNT))
    A("v_mov_b32 %s, %s" % (vCA, sT0))
    A("v_mov_b32 %s, 1" % vONE)
    A("s_mov_b32 %s, 0" % sFLAG)
    for b in range(1, NS):
        A("s_waitcnt vmcnt(%d)" % PW)
        load_k(b, sOFF[b])
        A("s_waitcnt vmcnt(%d)" % PW)
        load_v(b, sOFF[b])
    if tile_at in ("early", "split"):
        A("s_waitcnt vmcnt(%d)" % PW)
        for u in range(4):
            A("global_load_dwordx4 %s, %s, %s offset:%d%s" % (vr(WT + 16 + 4 * u, 4), vr(XO + 1), sWD, 2048 * (u - 2), wpol))
    if tile_at == "early":
        A("s_waitcnt vmcnt(%d)" % PW)
        for u in range(4):
            A("global_load_dwordx4 %s, %s, %s offset:%d%s" % (vr(WT + 4 * u, 4), vr(XO), sWO, 2048 * (u - 2), wpol))
    A("s_barrier")
    stamp()
    A("ds_read_b128 %s, %s offset:%d" % (vr(S1, 4), vT, L_Q))
    A("s_waitcnt lgkmcnt(0)")
    for t in range(4):
        A("v_cmp_eq_u32 vcc, %d, %s" % (t, vP))
        for r in range(4):
            A("v_cndmask_b32 %s, 0, %s, vcc" % (vr(AQ + 4 * t + r), vr(S1 + r)))

    resc = []

    def load_tile(dst, va, sb):
        for u in range(4):
            A("global_load_dwordx4 %s, %s, %s offset:%d%s" % (vr(dst + 4 * u, 4), va, sb, 2048 * (u - 2), wpol))

    assert NS == 2 and C <= 8 and CB <= 8

    def qk(b):
        for t in range(4):
            A("v_mfma_f32_16x16x32_bf16 %s, %s, %s, %s" % (vr(DQK, 4), vr(AQ + 4 * t, 4), vr(KB[b] + 4 * t, 4),
                                                         "0" if t == 0 else vr(DQK, 4)))

    def softmax_pv(b, tag, nv):
        A("v_mov_b32_dpp %s, %s quad_perm:[0,0,0,0] %s" % (vT, vr(DQK), FULL))
        A("v_mov_b32_dpp %s, %s quad_perm:[2,2,2,2] %s" % (vP, vr(DQK + 2), FULL))
        A("v_add_f32_dpp %s, %s, %s quad_perm:[1,1,1,1] %s" % (vT, vr(DQK + 1), vT, FULL))
        A("v_add_f32_dpp %s, %s, %s quad_perm:[3,3,3,3] %s" % (vP, vr(DQK + 3), vP, FULL))
        A("v_add_f32 %s, %s, %s" % (vT, vT, vP))
        round_bf16(vT)
        A("v_mul_f32 %s, %s, %s" % (vT, f32(SCALE), vT))
        round_bf16(vT)
        A("v_cmp_gt_f32 vcc, %s, %s" % (vT, vM))
        A("s_cbranch_vccnz L_resc_%s" % tag)
        A.label("L_back_%s" % tag)
        resc.append(tag)
        A("v_sub_f32 %s, %s, %s" % (vP, vT, vM))
        A("v_mul_f32 %s, %s, %s" % (vP, f32(LOG2E), vP))
        A("v_exp_f32 %s, %s" % (vP, vP))
        A("v_add_f32 %s, %s, %s" % (vL, vL, vP))
        A("v_cvt_pk_bf16_f32 %s, %s, %s" % (vP, vP, vP))
        A("v_and_b32 %s, %s, %s" % (vr(S1), vP, vr(MASK)))
        A("v_and_b32 %s, %s, %s" % (vr(S1 + 1), vP, vr(MASK + 1)))
        A("v_and_b32_dpp %s, %s, %s row_ror:4 %s" % (vr(S1 + 2), vP, vr(MASK + 2), FULL))
        A("v_and_b32_dpp %s, %s, %s row_ror:4 %s" % (vr(S1 + 3), vP, vr(MASK + 3), FULL))
        A("v_and_b32_dpp %s, %s, %s row_ror:12 %s" % (vr(S2), vP, vr(MASK), FULL))
        A("v_and_b32_dpp %s, %s, %s row_ror:12 %s" % (vr(S2 + 1), vP, vr(MASK + 1), FULL))
        A("v_and_b32 %s, %s, %s" % (vr(S2 + 2), vP, vr(MASK + 2)))
        A("v_and_b32 %s, %s, %s" % (vr(S2 + 3), vP, vr(MASK + 3)))
        A("s_waitcnt vmcnt(%d)" % nv)
        A("v_mfma_f32_16x16x32_bf16 %s, %s, %s, %s" % (vr(ACCL, 4), vr(S1, 4), vr(VB[b], 4), vr(ACCL, 4)))
        A("v_mfma_f32_16x16x32_bf16 %s, %s, %s, %s" % (vr(ACCH, 4), vr(S1, 4), vr(VB[b] + 8, 4), vr(ACCH, 4)))
        A("v_mfma_f32_16x16x32_bf16 %s, %s, %s, %s" % (vr(ACCL, 4), vr(S2, 4), vr(VB[b] + 4, 4), vr(ACCL, 4)))
        A("v_mfma_f32_16x16x32_bf16 %s, %s, %s, %s" % (vr(ACCH, 4), vr(S2, 4), vr(VB[b] + 12, 4), vr(ACCH, 4)))

    def tiles():
        load_tile(WT, vr(XO), sWO)
        load_tile(WT + 16, vr(XO + 1), sWD)

    def body(b, lp, cap, limit, target):
        tag = "%s%d" % (lp, b)
        A("s_waitcnt vmcnt(12)")
        qk(b)
        G = 2 if (pair and lp == "a") else 4
        mid = (cap - 2) if G == 2 else None
        dp = deep and lp == "b"
        A("s_waitcnt vmcnt(%d)" % (8 if dp else cap - G))
        A("v_readfirstlane_b32 %s, %s" % (sCUR[0], vAT))
        if ctl:
            A("s_lshr_b32 %s, %s, 16" % (sCUR[1], sCUR[0]))
        A("s_add_u32 %s, %s, %d" % (sCUR[0], sCUR[0], 64 * (NS + 1)))
        A("s_and_b32 %s, %s, 0xffff" % (sCUR[0], sCUR[0]))
        if lp == "a":
            A("s_cmp_ge_u32 %s, %d" % (sCUR[0], limit))
            A("s_cbranch_scc1 %s%d" % (target, b))
            if ctl:
                A("s_cmp_lt_u32 %s, %s" % (sCUR[0], sCUR[1]))
                A("s_cbranch_scc1 L_go_b%d" % b)
            A.label("L_go_a%d" % b)
        else:
            if ctl:
                A("s_cmp_ge_u32 %s, %d" % (sCUR[0], THR))
                A("s_cbranch_scc1 L_chk_b%d" % b)
                A("s_cmp_ge_u32 %s, %s" % (sCUR[0], sCUR[1]))
                A("s_cbranch_scc1 L_go_a%d" % b)
            A.label("L_chk_%s" % tag)
            A("s_cmp_ge_u32 %s, %d" % (sCUR[0], limit))
            A("s_cbranch_scc1 %s%d" % (target, b))
            A.label("L_go_b%d" % b)
        chunk_off(0)

        def ticket():
            if dyn:
                A("s_mov_b64 exec, 1")
                A("global_atomic_add %s, %s, %s, %s sc0" % (vAT, vCA, vONE, sWS))
                A("s_mov_b64 exec, -1")
            else:
                A("v_add_u32 %s, 64, %s" % (vAT, vAT))
        if dp:
            ticket()
            load_k(b, sOFF[0])
            softmax_pv(b, tag, 13)
            load_v(b, sOFF[0])
            return
        load_k(b, sOFF[0], mid)
        if at_k:
            ticket()
        softmax_pv(b, tag, 12)
        A("s_waitcnt vmcnt(%d)" % (cap - G + (1 if at_k and dyn else 0)))
        if not at_k:
            ticket()
        load_v(b, sOFF[0], mid)

    A.label("L_loopa")
    for b in range(NS):
        body(b, "a", C, THR, "L_chk_b")
    A("s_branch L_loopa")
    A.label("L_loopb")
    for b in range(NS):
        body(b, "b", CB, 2048, "L_drain")
    A("s_branch L_loopb")
    for b in range(NS):
        A.label("L_drain%d" % b)
        extra = 0
        if tile_at == "drain":
            tiles()
            extra = 8
        else:
            A("s_nop 3")
        softmax_pv(b, "d%d" % b, 8 + extra)
        A("s_waitcnt vmcnt(%d)" % (4 + extra))
        qk(b ^ 1)
        softmax_pv(b ^ 1, "e%d" % b, extra)
        if b == 0:
            A("s_branch L_exit")
    A.label("L_exit")
    if tile_at == "exit":
        tiles()
    elif tile_at == "split":
        load_tile(WT, vr(XO), sWO)
        A("s_nop 3")
    else:
        A("s_nop 7")
    stamp()
    wave_sum(vL, vT, [8, 4])
    for i in range(4):
        A("v_permlane32_swap_b32 %s, %s" % (vr(ACCH + i), vr(S1 + i)))
    for i in range(4):
        A("v_add_f32 %s, %s, %s" % (vr(ACCL + i), vr(ACCL + i), vr(S1 + i)))
    A("s_lshl_b32 %s, %s, 10" % (sT0, sWAVE))
    A("v_lshl_add_u32 %s, %s, 1, %s" % (vT, vU0, sT0))
    A("v_lshl_add_u32 %s, %s, 4, %s" % (vP, vLANE, sT0))
    A("ds_write_b64 %s, %s offset:%d" % (vP, "v[6:7]", L_P3 + 8))
    A("s_mov_b32 exec_hi, 0")
    A("ds_write_b64 %s, %s offset:%d" % (vT, vr(ACCL, 2), L_P3))
    A("ds_write_b64 %s, %s offset:%d" % (vT, vr(ACCL + 2, 2), L_P3 + 16))
    A("s_mov_b64 exec, -1")
    A("s_lshl_b32 %s, %s, 6" % (sT0, sWAVE))
    A("v_lshl_add_u32 %s, %s, 4, %s" % (vT, vG, sT0))
    A("s_waitcnt lgkmcnt(0)")
    A("s_barrier")
    if tile_at == "bar3":
        tiles()
    for (src_off, tile, dst_off, wait) in ((L_H, WT + 16, L_P1 + 512, 0), (L_O, WT, L_P1, None)):
        A("ds_read_b128 %s, %s offset:%d" % (vr(S1, 4), vT, src_off))
        A("s_waitcnt lgkmcnt(0)")
        for u in range(4):
            for r in range(4):
                A("v_and_b32 %s, %s, %s" % (vr(AQ + 4 * u + r), vr(S1 + u), vr(MASK + r)))
        if wait is not None:
            A("s_waitcnt vmcnt(%d)" % wait)
        for u in range(4):
            A("v_mfma_f32_16x16x32_bf16 %s, %s, %s, %s" % (vr(DQK, 4), vr(AQ + 4 * u, 4), vr(tile + 4 * u, 4),
                                                         "0" if u == 0 else vr(DQK, 4)))
        A("ds_write_b128 %s, %s offset:%d" % (vU1, vr(DQK, 4), dst_off))
        A("s_waitcnt lgkmcnt(0)")
        A("s_barrier")
    dump_stamps(nstamp[0])
    A("s_endpgm")
    for tag in resc:
        A.label("L_resc_%s" % tag)
        A("s_nop 7")
        A("v_max_f32_dpp %s, %s, %s row_ror:4 %s" % (vP, vT, vT, FULL))
        A("v_max_f32_dpp %s, %s, %s row_ror:8 %s" % (vP, vP, vP, FULL))
        A("v_mov_b32 %s, %s" % (vr(S1), vP))
        A("v_permlane16_swap_b32 %s, %s" % (vP, vr(S1)))
        A("v_max_f32 %s, %s, %s" % (vP, vP, vr(S1)))
        A("v_mov_b32 %s, %s" % (vr(S1), vP))
        A("v_permlane32_swap_b32 %s, %s" % (vP, vr(S1)))
        A("v_max3_f32 %s, %s, %s, %s" % (vP, vP, vr(S1), vM))
        A("v_sub_f32 %s, %s, %s" % (vr(S1), vM, vP))
        A("v_mul_f32 %s, %s, %s" % (vr(S1), f32(LOG2E), vr(S1)))
        A("v_exp_f32 %s, %s" % (vr(S1), vr(S1)))
        A("v_mov_b32 %s, %s" % (vM, vP))
        for i in range(4):
            A("v_mul_f32 %s, %s, %s" % (vr(ACCL + i), vr(ACCL + i), vr(S1)))
            A("v_mul_f32 %s, %s, %s" % (vr(ACCH + i), vr(ACCH + i), vr(S1)))
        A("v_mul_f32 %s, %s, %s" % (vL, vL, vr(S1)))
        A("s_branch L_back_%s" % tag)

    A.label("L_service")
    nstamp[0] = 1 if stamps else 0
    vL16, vL8, vX2, vX3, vXG, vDB, vRD = "v4", "v5", "v6", "v7", "v8", "v9", "v10"
    t0, t1, t2, t3 = "v12", "v13", "v14", "v15"
    R = 16
    XA, XB = "v24", "v25"
    E = 32
    sTAG = "s40"
    RA = 64
    E2 = 72
    nlab = [0]

    def spin_check(fail):
        A("s_sub_u32 %s, %s, 1" % (sSPIN, sSPIN))
        A("s_cmp_eq_u32 %s, 0" % sSPIN)
        A("s_cbranch_scc1 %s" % fail)

    def any_sentinel(regs):
        A("v_max3_u32 %s, %s, %s, %s" % (t0, regs[0], regs[1], regs[2]))
        k = 3
        while k + 1 < len(regs):
            A("v_max3_u32 %s, %s, %s, %s" % (t0, t0, regs[k], regs[k + 1]))
            k += 2
        if k < len(regs):
            A("v_max_u32 %s, %s, %s" % (t0, t0, regs[k]))
        A("v_cmp_eq_u32 vcc, -1, %s" % t0)

    def poll8(name, base, addr, sl):
        if not mpoll:
            A.label("L_poll%s" % name)
            for k in range(8):
                A("global_load_dwordx4 %s, %s sc1" % (vr(base + 4 * k, 4), addr(k)))
            spin_check("L_svc_end")
            A("s_waitcnt vmcnt(0)")
            any_sentinel([vr(base + i) for i in range(32)])
            A("s_cbranch_vccz L_got%s" % name)
            A("s_sleep %d" % sl)
            A("s_branch L_poll%s" % name)
            A.label("L_got%s" % name)
            return
        A.label("L_poll%s" % name)
        A("s_mov_b64 s[44:45], 0")
        for k in range(8):
            b = base + 4 * k
            A("v_max3_u32 %s, %s, %s, %s" % (t0, vr(b), vr(b + 1), vr(b + 2)))
            A("v_max_u32 %s, %s, %s" % (t0, t0, vr(b + 3)))
            A("v_cmp_eq_u32 vcc, -1, %s" % t0)
            A("s_cbranch_vccz L_sk%s_%d" % (name, k))
            A("s_mov_b64 exec, vcc")
            A("global_load_dwordx4 %s, %s sc1" % (vr(b, 4), addr(k)))
            A("s_mov_b64 exec, -1")
            A("s_mov_b64 s[44:45], -1")
            A.label("L_sk%s_%d" % (name, k))
        A("s_cmp_eq_u64 s[44:45], 0")
        A("s_cbranch_scc1 L_got%s" % name)
        spin_check("L_svc_end")
        A("s_sleep %d" % sl)
        A("s_waitcnt vmcnt(24)")
        A("s_branch L_poll%s" % name)
        A.label("L_got%s" % name)

    def sum8_lds(off):
        for w in range(W):
            A("ds_read_b128 %s, %s offset:%d" % (vr(E + 4 * w, 4), vL16, L_P1 + 1536 * w + off))
        A("s_waitcnt lgkmcnt(%d)" % (W - 2))
        for i in range(4):
            A("v_add_f32 %s, %s, %s" % (vr(R + i), vr(E + i), vr(E + 4 + i)))
        for w in range(2, W):
            A("s_waitcnt lgkmcnt(%d)" % (W - 1 - w))
            for i in range(4):
                A("v_add_f32 %s, %s, %s" % (vr(R + i), vr(R + i), vr(E + 4 * w + i)))

    def combine8(S=None):
        S = E if S is None else S
        m = [vr(S + 4 * k + 2) for k in range(8)]
        f = [vr(E + 4 * k + 2) for k in range(8)]
        M = vr(R + 2)
        A("v_max3_f32 %s, %s, %s, %s" % (M, m[0], m[1], m[2]))
        A("v_max3_f32 %s, %s, %s, %s" % (t0, m[3], m[4], m[5]))
        A("v_max3_f32 %s, %s, %s, %s" % (M, M, m[6], m[7]))
        A("v_max_f32 %s, %s, %s" % (M, M, t0))
        for k in range(8):
            A("v_sub_f32 %s, %s, %s" % (f[k], m[k], M))
        for k in range(8):
            A("v_mul_f32 %s, %s, %s" % (f[k], f32(LOG2E), f[k]))
        for k in range(8):
            A("v_exp_f32 %s, %s" % (f[k], f[k]))
        for j in (0, 1, 3):
            A("v_mul_f32 %s, %s, %s" % (vr(R + j), f[0], vr(S + j)))
        for k in range(1, 8):
            for j in (0, 1, 3):
                A("v_fmac_f32 %s, %s, %s" % (vr(R + j), f[k], vr(S + 4 * k + j)))

    def canon(n=4):
        for i in range(n):
            A("v_min_u32 %s, -2, %s" % (vr(R + i), vr(R + i)))

    A("s_setprio 3")
    A("v_lshlrev_b32 %s, 4, %s" % (vL16, vLANE))
    A("v_lshlrev_b32 %s, 3, %s" % (vL8, vLANE))
    A("s_mov_b32 %s, %d" % (sSPIN, spin))
    A("s_lshl_b32 %s, s2, 10" % sT0)
    A("v_add_u32 %s, %s, %s" % (vX2, sT0, vL16))
    A("s_mul_i32 %s, %s, %d" % (sT0, sH, RS))
    A("s_lshl_b32 %s, %s, 9" % (sT1, sS))
    A("s_add_u32 %s, %s, %s" % (sT0, sT0, sT1))
    A("s_add_u32 %s, %s, 0x%x" % (sT0, sT0, X3A))
    A("v_and_b32 %s, 31, %s" % (t0, vLANE))
    A("v_lshlrev_b32 %s, 4, %s" % (t0, t0))
    A("v_lshrrev_b32 %s, 5, %s" % (t1, vLANE))
    A("v_mul_u32_u24 %s, 0x%x, %s" % (t1, 32 * RS, t1))
    A("v_add3_u32 %s, %s, %s, %s" % (vX3, t1, t0, sT0))
    for i in range(4):
        A("v_mov_b32 %s, -1" % vr(R + i))
    A("s_cmp_lt_u32 %s, 28" % sH)
    A("s_cselect_b32 %s, 64, 32" % sT1)
    A("v_cmp_gt_u32 vcc, %s, %s" % (sT1, vLANE))
    A("v_cndmask_b32 %s, 0, -1, vcc" % vr(R + 4))
    A("v_mov_b32 %s, %s" % (vr(R + 5), vr(R + 4)))
    A("v_mov_b32 %s, %s" % (vr(R + 6), vr(R + 4)))
    A("v_mov_b32 %s, %s" % (vr(R + 7), vr(R + 4)))
    A("v_add_u32 %s, 0x%x, %s" % (t2, X1B, vX2))
    A("v_add_u32 %s, 0x%x, %s" % (vX2, X2, vX2))
    A("v_add_u32 %s, 0x%x, %s" % (t3, X1 - X2, vX2))
    A("s_waitcnt lgkmcnt(0)")
    A("s_load_dword %s, %s, 0x%x" % (sTAG, sWS, EPOCH))
    A("global_store_dwordx4 %s, %s, %s sc1" % (vX2, vr(R, 4), sWS))
    A("global_store_dwordx4 %s, %s, %s sc1" % (t2, vr(R, 4), sWS))
    A("global_store_dwordx4 %s, %s, %s sc1" % (vX3, vr(R + 4, 4), sWS))
    A("s_lshl_b32 %s, %s, %d" % (sT0, sH, cstride))
    A("s_add_u32 %s, %s, 0x%x" % (sT0, sT0, CNT))
    A("v_mov_b32 %s, %s" % (t0, sT0))
    A("v_mov_b32 %s, 0" % t1)
    A("s_mov_b64 exec, 1")
    A("global_store_dword %s, %s, %s sc1" % (t0, t1, sWS))
    A("s_mov_b64 exec, -1")
    A("s_lshl_b32 %s, %s, 13" % (sT0, sH))
    A("s_add_u32 %s, %s, 0x%x" % (sT0, sT0, X1 + 4096))
    A("v_add_u32 %s, %s, %s" % (vXG, sT0, vL16))
    A("v_mov_b32 %s, 0" % vRD)
    A("v_mov_b32 %s, 0" % vDB)
    A("v_lshlrev_b32 %s, 2, %s" % (t1, vLANE))
    A("s_waitcnt lgkmcnt(0)")
    A("s_mul_i32 %s, %s, 0x9e3779b1" % (sTAG, sTAG))
    A("s_add_u32 %s, %s, 0x7f4a7c15" % (sTAG, sTAG))
    A("v_mov_b32 %s, %s" % (vr(R + 1), sTAG))
    A("v_mov_b32 %s, %s" % (vr(R + 3), sTAG))
    A("s_waitcnt vmcnt(0)")
    A("s_barrier")
    stamp()
    for w in range(W):
        A("ds_read_b64 %s, %s offset:%d" % (vr(E + 2 * w, 2), vL8, L_P1 + 1536 * w))
    A("s_waitcnt lgkmcnt(%d)" % (W - 2))
    A("v_add_f32 %s, %s, %s" % (vr(R), vr(E), vr(E + 2)))
    A("v_add_f32 %s, %s, %s" % (vr(R + 2), vr(E + 1), vr(E + 3)))
    for w in range(2, W):
        A("s_waitcnt lgkmcnt(%d)" % (W - 1 - w))
        A("v_add_f32 %s, %s, %s" % (vr(R), vr(R), vr(E + 2 * w)))
        A("v_add_f32 %s, %s, %s" % (vr(R + 2), vr(R + 2), vr(E + 2 * w + 1)))
    A("global_store_dwordx4 %s, %s, %s sc1" % (t3, vr(R, 4), sWS))
    stamp()
    A.label("L_poll1")
    for k in range(8):
        A("global_load_dwordx4 %s, %s, %s offset:%d sc1" % (vr(E + 4 * k, 4), vXG, sWS, 1024 * k - 4096))
    spin_check("L_svc_end")
    A("s_waitcnt vmcnt(0)")
    tg = [vr(E + 2 * i + 1) for i in range(16)]
    A("v_max3_u32 %s, %s, %s, %s" % (t0, tg[0], tg[1], sTAG))
    A("v_min3_u32 %s, %s, %s, %s" % (t3, tg[0], tg[1], sTAG))
    for i in range(2, 16, 2):
        A("v_max3_u32 %s, %s, %s, %s" % (t0, t0, tg[i], tg[i + 1]))
        A("v_min3_u32 %s, %s, %s, %s" % (t3, t3, tg[i], tg[i + 1]))
    A("v_cmp_ne_u32 vcc, %s, %s" % (t0, t3))
    A("s_cbranch_vccnz L_poll1")
    stamp()
    A("v_add_f32 %s, %s, %s" % (vr(R), vr(E), vr(E + 4)))
    A("v_add_f32 %s, %s, %s" % (vr(R + 1), vr(E + 2), vr(E + 6)))
    for k in range(2, 8):
        A("v_add_f32 %s, %s, %s" % (vr(R), vr(R), vr(E + 4 * k)))
        A("v_add_f32 %s, %s, %s" % (vr(R + 1), vr(R + 1), vr(E + 4 * k + 2)))
    A("v_cvt_pk_bf16_f32 %s, %s, %s" % (t0, vr(R), vr(R + 1)))
    A("ds_write_b32 %s, %s offset:%d" % (t1, t0, L_Q))
    A("s_waitcnt lgkmcnt(0)")
    A("s_barrier")
    stamp()
    if tlb:
        A("s_lshl_b32 %s, %s, 23" % (sT0, sH))
        A("v_lshlrev_b32 %s, 17, %s" % (t0, vLANE))
        A("v_add_u32 %s, %s, %s" % (t0, sT0, t0))
        for i in range(tlb):
            A("global_load_dword %s, %s, %s nt" % (vr(E + 2 * i), t0, sK))
            A("global_load_dword %s, %s, %s nt" % (vr(E + 2 * i + 1), t0, sV))
            if i + 1 < tlb:
                A("v_add_u32 %s, 0x%x, %s" % (t0, (1 << 17) // tlb, t0))
        A("s_waitcnt vmcnt(0)")
    A("s_cmp_ge_u32 %s, 28" % sH)
    A("s_cbranch_scc1 L_noffn")
    sum8_lds(512)
    canon()
    A("global_store_dwordx4 %s, %s, %s sc1" % (t2, vr(R, 4), sWS))
    A("s_lshl_b32 %s, %s, 13" % (sT0, sH))
    A("s_add_u32 %s, %s, 0x%x" % (sT0, sT0, X1B + 4096))
    A("v_add_u32 %s, %s, %s" % (vXG, sT0, vL8))
    A.label("L_poll1b")
    for k in range(8):
        A("global_load_dwordx2 %s, %s, %s offset:%d sc1" % (vr(E + 4 * k, 2), vXG, sWS, 1024 * k - 4096))
        A("global_load_dwordx2 %s, %s, %s offset:%d sc1" % (vr(E + 4 * k + 2, 2), vXG, sWS, 1024 * k - 4096 + 512))
    spin_check("L_svc_end")
    A("s_waitcnt vmcnt(0)")
    any_sentinel([vr(E + i) for i in range(32)])
    A("s_cbranch_vccz L_got1b")
    A("s_sleep 8")
    A("s_branch L_poll1b")
    A.label("L_got1b")
    for i in range(4):
        A("v_add_f32 %s, %s, %s" % (vr(R + i), vr(E + i), vr(E + 4 + i)))
    for k in range(2, 8):
        for i in range(4):
            A("v_add_f32 %s, %s, %s" % (vr(R + i), vr(R + i), vr(E + 4 * k + i)))
    for i in range(4):
        round_bf16(vr(R + i))
    C1 = -2.0 * LOG2E * 0.7978845608028654
    for i, t in ((0, t0), (1, t1)):
        x = vr(R + i)
        A("v_mul_f32 %s, %s, %s" % (t, x, x))
        A("v_mul_f32 %s, %s, %s" % (t, f32(0.044715), t))
        A("v_fma_f32 %s, %s, %s, %s" % (t, t, x, x))
        A("v_mul_f32 %s, %s, %s" % (t, f32(C1), t))
        A("v_exp_f32 %s, %s" % (t, t))
        A("v_add_f32 %s, 1.0, %s" % (t, t))
        A("v_rcp_f32 %s, %s" % (t, t))
        A("v_mul_f32 %s, %s, %s" % (t, t, x))
        round_bf16(t)
        A("v_mul_f32 %s, %s, %s" % (t, t, vr(R + 2 + i)))
        A("v_cvt_pk_bf16_f32 %s, %s, %s" % (t, t, t))
    A("ds_write_b64 %s, v[12:13] offset:%d" % (vL8, L_H))
    A.label("L_noffn")
    stamp()
    A("s_cmp_ge_u32 %s, 4" % sH)
    A("s_cbranch_scc1 L_nored1")
    A("s_lshl_b32 %s, %s, 10" % (sT0, sS))
    A("s_add_u32 %s, %s, 0x%x" % (sT0, sT0, X1 + 4))
    A("v_and_b32 %s, 31, %s" % (t2, vLANE))
    A("v_lshlrev_b32 %s, 13, %s" % (t2, t2))
    A("v_add_u32 %s, %s, %s" % (t2, sT0, t2))
    A.label("L_pollc")
    A("s_sleep 32")
    A("global_load_dword %s, %s, %s sc1" % (t0, t2, sWS))
    spin_check("L_svc_end")
    A("s_waitcnt vmcnt(0)")
    A("v_cmp_ne_u32 vcc, %s, %s" % (sTAG, t0))
    A("s_cbranch_vccnz L_pollc")
    A("s_lshl_b32 %s, %s, 7" % (sT0, sS))
    A("s_lshl_b32 %s, %s, 5" % (sT1, sH))
    A("s_add_u32 %s, %s, %s" % (sT0, sT0, sT1))
    A("v_and_b32 %s, 7, %s" % (t0, vLANE))
    A("v_lshrrev_b32 %s, 3, %s" % (t1, vLANE))
    A("v_mul_u32_u24 %s, 0x%x, %s" % (vRD, RS, t1))
    A("v_lshl_add_u32 %s, %s, 4, %s" % (vRD, t0, vRD))
    A("s_lshl_b32 %s, %s, 2" % (sT1, sT0))
    A("s_add_u32 %s, %s, 0x%x" % (sT1, sT1, X3A))
    A("v_add_u32 %s, %s, %s" % (vRD, sT1, vRD))
    A("v_and_b32 %s, 1, %s" % (t1, vG))
    A("v_lshl_add_u32 %s, %s, 2, %s" % (t0, t0, t1))
    A("v_add_u32 %s, %s, %s" % (t0, sT0, t0))
    A("v_lshlrev_b32 %s, 1, %s" % (vDB, t0))
    A("global_load_ushort %s, %s, %s" % (XA, vDB, sX))
    A("global_load_ushort %s, %s, %s offset:4" % (XB, vDB, sX))
    A.label("L_nored1")
    for k in range(1, 8):
        A("v_add_u32 %s, 0x%x, %s" % (vr(RA + k), 8 * RS * k, vRD))
    A("s_lshl_b32 %s, %s, 13" % (sT0, sH))
    A("s_add_u32 %s, %s, 0x%x" % (sT0, sT0, X2 + 4096))
    A("v_add_u32 %s, %s, %s" % (vXG, sT0, vL16))
    for i in range(32):
        A("v_mov_b32 %s, -1" % vr(E2 + i))
        A("v_mov_b32 %s, -1" % vr(124 + i))
    A("s_waitcnt vmcnt(0) lgkmcnt(0)")
    stamp()
    if ctl:
        A("s_cmp_lg_u32 %s, 1" % sS)
        A("s_cbranch_scc1 L_noctl")
        A("v_and_b32 %s, 31, %s" % (t2, vLANE))
        A("v_lshlrev_b32 %s, %d, %s" % (t2, cstride, t2))
        A("v_add_u32 %s, 0x%x, %s" % (t2, CNT, t2))
        A("s_lshl_b32 %s, %s, %d" % (sT0, sH, cstride))
        A("s_add_u32 %s, %s, 0x%x" % (sT0, sT0, CNT))
        A("v_mov_b32 %s, %s" % (t3, sT0))
        A("s_mov_b32 s41, 0")
        A("s_movk_i32 s42, 400")
        A.label("L_ctl")
        A("s_sleep %d" % ctl)
        A("global_load_dword %s, %s, %s sc1" % (t0, t2, sWS))
        A("s_waitcnt vmcnt(0)")
        A("v_and_b32 %s, 0xffff, %s" % (t0, t0))
        A("v_min_u32 %s, 0x740, %s" % (t0, t0))
        A("v_readlane_b32 %s, %s, %s" % (sT0, t0, sH))
        for r in (8, 4, 2, 1):
            A("v_add_u32_dpp %s, %s, %s row_ror:%d %s" % (t0, t0, t0, r, FULL))
        A("v_readlane_b32 %s, %s, 0" % (sT1, t0))
        A("v_readlane_b32 %s, %s, 16" % (sT2, t0))
        A("s_add_u32 %s, %s, %s" % (sT1, sT1, sT2))
        A("s_lshr_b32 %s, %s, 5" % (sT1, sT1))
        A("s_cmp_ge_u32 %s, %d" % (sT0, THR - 192 - 64))
        A("s_cbranch_scc1 L_noctl")
        A("s_sub_u32 s42, s42, 1")
        A("s_cmp_eq_u32 s42, 0")
        A("s_cbranch_scc1 L_noctl")
        A("s_sub_i32 %s, %s, %s" % (sT1, sT1, sT0))
        A("s_cmp_le_i32 %s, %d" % (sT1, ctlD))
        A("s_cbranch_scc1 L_ctl")
        A("s_add_u32 %s, %s, 192" % (sT0, sT0))
        A("s_cmp_lt_u32 %s, s41" % sT0)
        A("s_cbranch_scc1 L_ctl")
        A("s_min_u32 %s, %s, 64" % (sT1, sT1))
        A("s_mul_i32 %s, %s, %d" % (sT1, sT1, ctlK))
        A("s_add_u32 %s, %s, %s" % (sT0, sT0, sT1))
        A("s_add_u32 %s, %s, 32" % (sT0, sT0))
        A("s_sub_u32 %s, %s, s41" % (sT1, sT0))
        A("s_mov_b32 s41, %s" % sT0)
        A("s_lshl_b32 %s, %s, 16" % (sT1, sT1))
        A("v_mov_b32 %s, %s" % (t1, sT1))
        A("s_mov_b64 exec, 1")
        A("global_atomic_add %s, %s, %s" % (t3, t1, sWS))
        A("s_mov_b64 exec, -1")
        A("s_branch L_ctl")
        A.label("L_noctl")
        A("s_waitcnt vmcnt(0)")
    if stamps and dyn:
        A("s_cmp_lg_u32 %s, 0" % sS)
        A("s_cbranch_scc1 L_nosamp")
        A("s_mov_b64 exec, 1")
        A("s_lshl_b32 %s, %s, %d" % (sT0, sH, cstride))
        A("s_add_u32 %s, %s, 0x%x" % (sT0, sT0, CNT))
        A("v_mov_b32 v120, %s" % sT0)
        A("s_lshl_b32 %s, %s, 11" % (sT0, sH))
        A("s_add_u32 %s, %s, 0x300000" % (sT0, sT0))
        A("v_mov_b32 v121, %s" % sT0)
        A("s_movk_i32 %s, 250" % sCNT)
        A.label("L_samp")
        A("global_load_dword v123, v120, %s sc1" % sWS)
        A("s_waitcnt vmcnt(0)")
        A("s_memrealtime s[60:61]")
        A("s_waitcnt lgkmcnt(0)")
        A("v_mov_b32 v122, s60")
        A("global_store_dwordx2 v121, v[122:123], %s" % sWS)
        A("v_add_u32 v121, 8, v121")
        A("v_readfirstlane_b32 %s, v123" % sT0)
        A("s_and_b32 %s, %s, 0xffff" % (sT0, sT0))
        A("s_sleep 8")
        A("s_sub_u32 %s, %s, 1" % (sCNT, sCNT))
        A("s_cmp_eq_u32 %s, 0" % sCNT)
        A("s_cbranch_scc1 L_sampdone")
        A("s_cmp_lt_u32 %s, 1856" % sT0)
        A("s_cbranch_scc1 L_samp")
        A.label("L_sampdone")
        A("s_mov_b64 exec, -1")
        A("s_waitcnt vmcnt(0)")
        A.label("L_nosamp")
    A("s_barrier")
    stamp()
    for w in range(W):
        A("ds_read_b128 %s, %s offset:%d" % (vr(E + 4 * w, 4), vL16, L_P3 + 1024 * w))
    A("s_waitcnt lgkmcnt(0)")
    combine8()
    canon()
    A("global_store_dwordx4 %s, %s, %s sc1" % (vX2, vr(R, 4), sWS))
    stamp()
    poll8("2", E2, lambda k: "%s, %s offset:%d" % (vXG, sWS, 1024 * k - 4096), sl2)
    stamp()
    combine8(E2)
    A("v_rcp_f32 %s, %s" % (t0, vr(R + 3)))
    A("v_mul_f32 %s, %s, %s" % (t2, vr(R), t0))
    A("v_mul_f32 %s, %s, %s" % (t3, vr(R + 1), t0))
    A("v_cvt_pk_bf16_f32 %s, %s, %s" % (t2, t2, t2))
    A("v_cvt_pk_bf16_f32 %s, %s, %s" % (t3, t3, t3))
    A("ds_write_b64 %s, v[14:15] offset:%d" % (vL8, L_O))
    A("s_waitcnt lgkmcnt(0)")
    A("s_barrier")
    A("s_cmp_lt_u32 %s, 28" % sH)
    A("s_cselect_b32 %s, -1, 0" % sT1)
    A("s_barrier")
    sum8_lds(0)
    canon()
    A("s_mov_b32 exec_hi, %s" % sT1)
    A("global_store_dwordx4 %s, %s, %s sc1" % (vX3, vr(R, 4), sWS))
    A("s_mov_b64 exec, -1")
    stamp()
    A("s_cmp_ge_u32 %s, 4" % sH)
    A("s_cbranch_scc1 L_svc_end")
    E3 = 124
    poll8("3", E3, lambda k: "%s, %s" % (vRD if k == 0 else vr(RA + k), sWS), sl3)
    stamp()
    for half in (0, 16):
        for i in range(4):
            A("v_add_f32 %s, %s, %s" % (vr(E + half + i), vr(E3 + half + i), vr(E3 + half + 4 + i)))
            A("v_add_f32 %s, %s, %s" % (vr(E + half + 8 + i), vr(E3 + half + 8 + i), vr(E3 + half + 12 + i)))
        for i in range(4):
            A("v_add_f32 %s, %s, %s" % (vr(E + half + i), vr(E + half + i), vr(E + half + 8 + i)))
    for i in range(4):
        A("v_permlane32_swap_b32 %s, %s" % (vr(E + i), vr(E + 16 + i)))
    for i in range(4):
        A("v_add_f32 %s, %s, %s" % (vr(E + i), vr(E + i), vr(E + 16 + i)))
    A("v_permlane16_swap_b32 %s, %s" % (vr(E), vr(E + 1)))
    A("v_permlane16_swap_b32 %s, %s" % (vr(E + 2), vr(E + 3)))
    A("v_add_f32 %s, %s, %s" % (t0, vr(E), vr(E + 1)))
    A("v_add_f32 %s, %s, %s" % (t1, vr(E + 2), vr(E + 3)))
    A("v_add_f32_dpp %s, %s, %s row_ror:8 %s" % (t0, t0, t0, FULL))
    A("v_add_f32_dpp %s, %s, %s row_ror:8 %s" % (t1, t1, t1, FULL))
    round_bf16(t0)
    round_bf16(t1)
    A("v_permlane32_swap_b32 %s, %s" % (t0, t2))
    A("v_permlane32_swap_b32 %s, %s" % (t1, t3))
    A("v_lshlrev_b32 %s, 16, %s" % (XA, XA))
    A("v_lshlrev_b32 %s, 16, %s" % (XB, XB))
    A("v_add_f32 %s, %s, %s" % (t0, t0, XA))
    A("v_add_f32 %s, %s, %s" % (t1, t1, XB))
    round_bf16(t0)
    round_bf16(t1)
    A("v_add_f32 %s, %s, %s" % (t0, t0, t2))
    A("v_add_f32 %s, %s, %s" % (t1, t1, t3))
    A("v_cvt_pk_bf16_f32 %s, %s, %s" % (t0, t0, t0))
    A("v_cvt_pk_bf16_f32 %s, %s, %s" % (t1, t1, t1))
    A("s_mov_b64 exec, 0x00ff00ff")
    A("global_store_short %s, %s, %s" % (vDB, t0, sOUT))
    A("global_store_short %s, %s, %s offset:4" % (vDB, t1, sOUT))
    A("s_cmp_lg_u32 s2, 0")
    A("s_cbranch_scc1 L_noepoch")
    A("s_mov_b64 exec, 1")
    A("v_mov_b32 %s, 0x%x" % (t2, EPOCH))
    A("v_mov_b32 %s, %s" % (t3, sTAG))
    A("global_store_dword %s, %s, %s sc1" % (t2, t3, sWS))
    A.label("L_noepoch")
    stamp()
    A.label("L_svc_end")
    dump_stamps(14)
    A.label("L_end")
    A("s_endpgm")

    errs = A.verify_edges()
    if errs:
        raise RuntimeError("\n".join(errs))
    mv, ms = A.max_regs()
    nv = mv + 1
    acc = (nv + 3) // 4 * 4
    out = HEADER
    out += "; @launch grid=(256,1,1) block=(%d,1,1) lds=%d\n" % (64 * (W + 1), LDS_BYTES)
    out += ".amdgcn_target \"amdgcn-amd-amdhsa--gfx950\"\n.text\n"
    out += ".globl %s_kernel\n.p2align 8\n.type %s_kernel,@function\n%s_kernel:\n" % (NAME, NAME, NAME)
    out += A.text()
    out += """.section .rodata,"a"
.p2align 6
.amdhsa_kernel %s_kernel
  .amdhsa_next_free_vgpr %d
  .amdhsa_next_free_sgpr %d
  .amdhsa_accum_offset %d
  .amdhsa_group_segment_fixed_size 0
  .amdhsa_kernarg_size 96
  .amdhsa_user_sgpr_count 2
  .amdhsa_user_sgpr_kernarg_segment_ptr 1
  .amdhsa_system_sgpr_workgroup_id_x 1
  .amdhsa_float_denorm_mode_32 3
  .amdhsa_float_denorm_mode_16_64 3
.end_amdhsa_kernel
""" % (NAME, nv, ms + 1, acc)
    return out


if __name__ == "__main__":
    ap = argparse.ArgumentParser()
    ap.add_argument("-o", default="cdna_kernels/%s.s" % NAME)
    ap.add_argument("--ns", type=int, default=2)
    ap.add_argument("--stamps", action="store_true")
    ap.add_argument("--cap", type=int, default=4)
    ap.add_argument("--static", action="store_true")
    ap.add_argument("--rot", type=int, default=0)
    ap.add_argument("--wdef", action="store_true")
    ap.add_argument("--cp", type=int, default=4)
    ap.add_argument("--thr", type=int, default=1920)
    ap.add_argument("--cb", type=int, default=8)
    ap.add_argument("--tile", default="exit")
    ap.add_argument("--skew", type=int, default=0)
    ap.add_argument("--atk", action="store_true")
    ap.add_argument("--tlb", type=int, default=0)
    ap.add_argument("--cstride", type=int, default=8)
    ap.add_argument("--sl2", type=int, default=2)
    ap.add_argument("--sl3", type=int, default=2)
    ap.add_argument("--pair", action="store_true")
    ap.add_argument("--mpoll", action="store_true")
    ap.add_argument("--ctl", type=int, default=0)
    ap.add_argument("--sub", type=int, default=0)
    ap.add_argument("--deep", action="store_true")
    ap.add_argument("--ctld", type=int, default=6)
    ap.add_argument("--ctlk", type=int, default=2)
    a = ap.parse_args()
    txt = gen(NS=a.ns, C=a.cap, stamps=a.stamps, dyn=not a.static, rot=a.rot, wpol="" if a.wdef else " nt",
              CP=a.cp, THR=a.thr, CB=a.cb, tile_at=a.tile, skew=a.skew, at_k=a.atk, tlb=a.tlb, cstride=a.cstride, sl2=a.sl2, sl3=a.sl3, pair=a.pair, mpoll=a.mpoll, ctl=a.ctl, ctlD=a.ctld, ctlK=a.ctlk, sub=a.sub, deep=a.deep)
    open(a.o, "w").write(txt)
    print("wrote", a.o, len(txt), "bytes")
```
